```python
import torch

def _softmax(x, axis=-1):
    return torch.softmax(x, dim=axis)
def _gelu(x):
    return torch.nn.functional.gelu(x, approximate="tanh")
def _silu(x):
    return torch.nn.functional.silu(x)
def _sigmoid(x):
    return torch.sigmoid(x)
def _layernorm(x, axis=-1, eps=1e-5):
    m = x.mean(dim=axis, keepdim=True)
    v = x.var(dim=axis, keepdim=True, unbiased=False)
    return (x - m) / torch.sqrt(v + eps)
def _scatter_add(tgt, idx, src, axis=0):
    return tgt.clone().index_add_(axis, idx, src)
def _segment_sum(src, seg, n):
    out = torch.zeros((n,) + src.shape[1:], dtype=src.dtype)
    return out.index_add_(0, seg, src)
def _pad(x, pw):
    flat = tuple(v for pair in reversed(pw) for v in pair)
    return torch.nn.functional.pad(x, flat)

kernel_name = 'interleave_layers__sliding_block__dense_activation_silu__prompt'

def setup_inputs():

    _w = (lambda a: (lambda t: t.to(torch.bfloat16) if t.is_floating_point() else t)(torch.as_tensor(a)))
    def _A_setup():
        B, S, D = 1, 2048, 512
        return {
            "x": _w((lambda *s: torch.randn(*s, dtype=torch.bfloat16) * 0.05)(B, S, D)),
            "wqkv": _w((lambda *s: torch.randn(*s, dtype=torch.bfloat16) * 0.05)(D, 3 * D)),
            "wo": _w((lambda *s: torch.randn(*s, dtype=torch.bfloat16) * 0.05)(D, D)),
        }
    _A_in = _A_setup()

    def _B_setup():
        B, S, D, F = 1, 2048, 512, 1792
        return {
            "x": _w((lambda *s: torch.randn(*s, dtype=torch.bfloat16) * 0.05)(B, S, D)),
            "w1": _w((lambda *s: torch.randn(*s, dtype=torch.bfloat16) * 0.8)(D, F) * (D ** -0.5)),
            "w2": _w((lambda *s: torch.randn(*s, dtype=torch.bfloat16) * 0.8)(F, D) * (F ** -0.5)),
        }
    _B_in = _B_setup()

    return {
        "A_x": _A_in["x"],
        "A_wqkv": _A_in["wqkv"],
        "A_wo": _A_in["wo"],
        "B_x": _B_in["x"],
        "B_w1": _B_in["w1"],
        "B_w2": _B_in["w2"],
    }

def reference(A_x, A_wqkv, A_wo, B_x, B_w1, B_w2):
    def _A_ref(x, wqkv, wo):
        B, S, D = x.shape
        H = 32; Dh = D // H; W = 256
        qkv = (lambda x, *d: x.permute(*d))((x @ wqkv).reshape(B, S, 3, H, Dh), 2, 0, 3, 1, 4)
        q, k, v = qkv[0], qkv[1], qkv[2]
        scores = torch.einsum("bhqd,bhkd->bhqk", q, k) * (Dh ** -0.5)
        idx = torch.arange(S)
        mask = (idx[:, None] - idx[None, :] >= 0) & (idx[:, None] - idx[None, :] < W)
        scores = torch.where(mask[None, None], scores, -1e9)
        p = _softmax(scores, axis=-1)
        o = torch.einsum("bhqk,bhkd->bhqd", p, v)
        return (lambda x, *d: x.permute(*d))(o, 0, 2, 1, 3).reshape(B, S, D) @ wo

    def _B_ref(x, w1, w2):
        h = torch.einsum("bsd,df->bsf", x, w1)
        h = _silu(h)
        out = torch.einsum("bsf,fd->bsd", h, w2)
        return out

    x = A_x
    x = x + _A_ref(_layernorm(x, axis=-1), A_wqkv, A_wo)
    x = x + _B_ref(_layernorm(x, axis=-1), B_w1, B_w2)
    x = x + _A_ref(_layernorm(x, axis=-1), A_wqkv, A_wo)
    x = x + _B_ref(_layernorm(x, axis=-1), B_w1, B_w2)
    return x
```

```python
import re
REF = 'interleave_layers__sliding_block__dense_activation_silu__prompt.s.ref'

_reg = re.compile(r'^(-|abs\()?\|?([vas])(\d+)\|?\)?$')
_rng = re.compile(r'^(-|abs\()?([vas])\[(\d+):(\d+)\]\)?$')
TRANS = ('v_exp_f32', 'v_log_f32', 'v_rcp_f32', 'v_rsq_f32', 'v_sqrt_f32', 'v_sin_f32', 'v_cos_f32')

def regs_of(tok):
    tok = tok.strip()
    m = _reg.match(tok)
    if m: return {(m.group(2), int(m.group(3)))}
    m = _rng.match(tok)
    if m: return {(m.group(2), i) for i in range(int(m.group(3)), int(m.group(4)) + 1)}
    if tok in ('vcc', 'vcc_lo', 'vcc_hi'): return {('s', 106), ('s', 107)}
    if tok in ('exec', 'exec_lo', 'exec_hi'): return {('x', 0)}
    if tok == 'm0': return {('m', 0)}
    return set()

class Ins:
    __slots__ = ('text', 'op', 'kind', 'rd', 'wr', 'passes', 'A', 'B', 'C', 'states', 'label', 'target', 'data', 'wide', 'dpp', 'lds_dma', 'sread')
    def __init__(self, text):
        self.text = text
        t = text.split(';')[0].strip()
        self.label = None; self.target = None
        self.rd = set(); self.wr = set(); self.passes = 0; self.A = self.B = self.C = set()
        self.states = 1; self.kind = 'other'; self.op = ''; self.data = set(); self.wide = False; self.dpp = False; self.lds_dma = False
        if not t:
            self.states = 0; self.kind = 'none'; return
        if t.endswith(':'):
            self.label = t[:-1]; self.states = 0; self.kind = 'label'; return
        if t.startswith('.'):
            self.states = 0; self.kind = 'none'; return
        parts = t.split(None, 1)
        op = self.op = parts[0]
        rest = parts[1] if len(parts) > 1 else ''
        ops = []; depth = 0; cur = ''
        for ch in rest:
            if ch in '[(': depth += 1
            if ch in '])': depth -= 1
            if ch == ',' and depth == 0: ops.append(cur.strip()); cur = ''
            else: cur += ch
        if cur.strip(): ops.append(cur.strip())
        mods = ''
        if ops:
            last = ops[-1].split(None, 1)
            ops[-1] = last[0]
            mods = last[1] if len(last) > 1 else ''
        R = [regs_of(o) for o in ops]
        allr = set().union(*R) if R else set()
        if op == 's_nop':
            self.states = int(ops[0], 0) + 1; self.kind = 'nop'
        elif op.startswith('v_mfma'):
            self.kind = 'mfma'; self.passes = 8 if '32x32x16' in op else 4 if '16x16x32' in op else None
            assert self.passes, op
            self.wr = R[0]; self.A, self.B, self.C = R[1], R[2], R[3]; self.rd = R[1] | R[2] | R[3]
        elif op.startswith('v_'):
            self.kind = 'trans' if op.replace('_e32','').replace('_e64','') in TRANS else 'valu'
            self.dpp = 'dpp' in op or 'row_' in mods or 'quad_perm' in mods
            if 'permlane' in op and 'swap' in op:
                self.wr = allr; self.rd = allr
            elif op.startswith('v_cmp'):
                self.wr = R[0]; self.rd = set().union(*R[1:])
                if op.startswith('v_cmpx'): self.wr = self.wr | {('x', 0)}
            elif '_co_' in op:
                self.wr = R[0] | R[1]; self.rd = set().union(*R[2:])
            else:
                self.wr = R[0]; self.rd = set().union(*R[1:]) if len(R) > 1 else set()
                if 'fmac' in op or 'dot2c' in op or self.dpp or 'writelane' in op: self.rd = self.rd | R[0]
                if op.startswith('v_cndmask') and len(ops) == 3: self.rd = self.rd | regs_of('vcc')
        elif op.startswith('buffer_') or op.startswith('global_'):
            self.kind = 'vmem'
            toks = mods.split()
            if 'lds' in toks:
                self.lds_dma = True; self.rd = allr | {('m', 0)}
            elif 'load' in op:
                self.wr = R[0]; self.rd = set().union(*R[1:])
            else:
                self.rd = allr
                self.data = R[0] if op.startswith('buffer_') else R[1]
                self.wide = 'x3' in op or 'x4' in op
                if 'atomic' in op and 'sc0' in toks: self.wr = R[0]
        elif op.startswith('ds_'):
            self.kind = 'ds'
            if 'read' in op or 'rtn' in op or 'permute' in op or 'swizzle' in op:
                self.wr = R[0]; self.rd = set().union(*R[1:])
            else:
                self.rd = allr
        elif op.startswith('s_'):
            self.kind = 'salu'
            if op.startswith('s_cbranch') or op == 's_branch':
                self.kind = 'branch'; self.target = ops[0]
            elif op.startswith('s_cmp') or op.startswith('s_bitcmp') or op in ('s_waitcnt', 's_barrier', 's_sleep', 's_setprio', 's_endpgm'):
                self.rd = allr
            else:
                self.wr = R[0] if R else set(); self.rd = set().union(*R[1:]) if len(R) > 1 else set()
                if 'saveexec' in op: self.wr = self.wr | {('x', 0)}

def isv(s): return {r for r in s if r[0] in 'va'}
def iss(s): return {r for r in s if r[0] == 's'}

def need(p, c):
    n = 0
    pv = p.kind in ('valu', 'trans'); cv = c.kind in ('valu', 'trans')
    if pv:
        if c.kind == 'mfma' and isv(p.wr) & c.rd: n = max(n, 2)
        if c.kind == 'mfma' and ('x', 0) in p.wr: n = max(n, 4)
        sw = iss(p.wr)
        if sw:
            if c.kind == 'vmem' and sw & c.rd: n = max(n, 5)
            if cv and sw & c.rd: n = max(n, 4 if ('readlane' in c.op or 'writelane' in c.op) else 2)
            if c.kind in ('salu', 'branch') and (sw & c.rd or 'vcc' in c.op): n = max(n, 1)
        if cv and isv(p.wr) & c.rd:
            if c.dpp: n = max(n, 2)
            if 'permlane' in c.op: n = max(n, 2)
            if 'readfirstlane' in c.op or 'readlane' in c.op: n = max(n, 1)
            if p.kind == 'trans' and c.kind != 'trans': n = max(n, 1)
        if p.kind == 'trans' and c.kind in ('vmem', 'ds', 'trans') and isv(p.wr) & c.rd: n = max(n, 1)
        if ('x', 0) in p.wr and cv: n = max(n, 5 if c.dpp else 4)
    if p.kind == 'mfma':
        big = 12 if p.passes == 8 else 8
        if c.kind == 'mfma':
            if p.wr & (c.A | c.B): n = max(n, big)
            if p.wr & c.C and not (p.wr == c.C and p.passes == c.passes): n = max(n, big - 2)
            if p.wr & c.wr and not (p.wr == c.wr and p.passes == c.passes): n = max(n, big)
        elif cv or c.kind in ('vmem', 'ds'):
            if p.wr & (c.rd | c.wr): n = max(n, big)
            if cv and isv(p.C) & c.wr: n = max(n, 7 if p.passes == 8 else 3)
    if p.kind == 'vmem' and p.wide and p.data & c.wr:
        n = max(n, 2 if cv else 1)
    if p.kind == 'salu' and ('m', 0) in p.wr and c.lds_dma: n = max(n, 1)
    return n

WIN = 14
def fix_hazards(lines):
    ins = [Ins(l) for l in lines]
    out = []
    for c in ins:
        if c.states and c.kind != 'nop':
            d = 0; req = 0
            for p in reversed(out):
                if d >= WIN: break
                if p.states and p.kind != 'nop':
                    req = max(req, need(p, c) - d)
                d += p.states
            if req > 0:
                out.append(Ins(f'    s_nop {req-1}'))
        out.append(c)
    changed = True
    while changed:
        changed = False
        labels = {x.label: i for i, x in enumerate(out) if x.label}
        for b, x in enumerate(out):
            if x.kind != 'branch' or x.target not in labels: continue
            t = labels[x.target]
            dc = 0; worst = 0
            for c in out[t:]:
                if dc >= WIN: break
                if c.states and c.kind != 'nop':
                    d = dc
                    for p in reversed(out[:b+1]):
                        if d >= WIN: break
                        if p.states and p.kind != 'nop':
                            worst = max(worst, need(p, c) - d)
                        d += p.states
                dc += c.states
                if c.op in ('s_branch', 's_endpgm'): break
            if worst > 0:
                out.insert(b, Ins(f'    s_nop {worst-1}'))
                changed = True
                break
    return [x.text for x in out]

class Asm:
    def __init__(self):
        self.launches = []; self.kernels = []; self.cur = None; self.nlabel = 0
    def launch(self, name, grid, block, lds=0):
        self.launches.append(f'; @launch kernel={name} grid=({grid},1,1) block=({block},1,1) lds={lds}')
    def kernel(self, name, vgpr=256, sgpr=102, accum=None):
        self.cur = []
        self.kernels.append([name, self.cur, vgpr, sgpr, accum if accum is not None else min(256, (vgpr+3)//4*4)])
    def __call__(self, s):
        for l in s.strip('\n').split('\n'):
            l = l.strip()
            if not l: continue
            self.cur.append(l if l.split(';')[0].strip().endswith(':') else '    ' + l)
    def label(self, base='L'):
        self.nlabel += 1
        return f'{base}_{self.nlabel}'
    def text(self):
        out = open(REF).read().split('\n')[:10] + self.launches
        out.append('.amdgcn_target "amdgcn-amd-amdhsa--gfx950"')
        out.append('.text')
        for name, body, *_ in self.kernels:
            out += [f'.globl {name}', '.p2align 8', f'.type {name},@function', f'{name}:'] + fix_hazards(body) + ['    s_endpgm']
        out.append('.section .rodata,"a"')
        for name, body, vgpr, sgpr, accum in self.kernels:
            out += ['.p2align 6', f'.amdhsa_kernel {name}', f'  .amdhsa_next_free_vgpr {vgpr}', f'  .amdhsa_next_free_sgpr {sgpr}',
                    f'  .amdhsa_accum_offset {accum}', '  .amdhsa_group_segment_fixed_size 0', '  .amdhsa_kernarg_size 72',
                    '  .amdhsa_user_sgpr_count 2', '  .amdhsa_user_sgpr_kernarg_segment_ptr 1', '  .amdhsa_system_sgpr_workgroup_id_x 1',
                    '.end_amdhsa_kernel']
        return '\n'.join(out) + '\n'
    def write(self, path):
        open(path, 'w').write(self.text())

def v(i, n=1): return f'v{i}' if n == 1 else f'v[{i}:{i+n-1}]'
def a_(i, n=1): return f'a{i}' if n == 1 else f'a[{i}:{i+n-1}]'
def s(i, n=1): return f's{i}' if n == 1 else f's[{i}:{i+n-1}]'
```

```python
import sys
from asmfw import *
KB = 1024; MB = 1 << 20
FLAG = 0; FKV = 256*KB
WOC = 1*MB; W2C = WOC + 512*KB; W1C = W2C + 1792*KB; CS1 = W1C + 1792*KB
LB0 = 8*MB; LSTR = 32*MB
XF = 0; XS = 2*MB; KVO = 3*MB; OF = 7*MB; X2F = 9*MB; X2S = 11*MB; HF = 12*MB
DUMP = 200*MB
L_KV = 96*KB; SLOT = 4160
L_S0 = 88*KB; L_S1 = 122*KB; RSTR = 272; RW = 32*RSTR
L_TAB = 156*KB
T_CQ = L_TAB
T_C1 = L_TAB + 1536
T_AB = L_TAB + 2048
LOG2E = 1.4426950408889634
import struct
def f2u(x): return struct.unpack('<I', struct.pack('<f', x))[0]

class Ctr:
    def __init__(self, a, name, mx): self.a = a; self.name = name; self.mx = mx; self.q = []
    def issue(self, tag=None): self.q.append(tag)
    def wait(self, tag):
        if tag not in self.q: return
        i = len(self.q) - 1 - self.q[::-1].index(tag)
        n = len(self.q) - 1 - i
        self.a(f's_waitcnt {self.name}({min(n, self.mx)})')
        self.q = self.q[i+1:]
    def wait_all(self):
        self.a(f's_waitcnt {self.name}(0)'); self.q = []

def srd(a, d, base, size):
    a(f's_mov_b32 s{d}, s{base}\ns_mov_b32 s{d+1}, s{base+1}\ns_mov_b32 s{d+2}, {hex(size)}\ns_mov_b32 s{d+3}, 0x00020000')

def gen_prep(a):
    a.kernel('prep_kernel', vgpr=64, sgpr=64)
    a('''
    s_load_dwordx2 s[40:41], s[0:1], 64
    s_load_dwordx2 s[42:43], s[0:1], 16
    s_load_dwordx2 s[44:45], s[0:1], 32
    s_load_dwordx2 s[46:47], s[0:1], 40
    s_cmp_ge_u32 s2, 256
    s_cbranch_scc1 P_end
    v_lshrrev_b32 v1, 6, v0
    v_readfirstlane_b32 s20, v1
    v_and_b32 v1, 63, v0            ; lane
    s_lshl_b32 s21, s2, 2
    s_add_u32 s21, s21, s20         ; item
    s_waitcnt lgkmcnt(0)
    ''')
    srd(a, 4, 40, 0x10000000)
    a('''
    v_mov_b32 v2, 0
    v_mov_b32 v3, 0
    v_lshlrev_b32 v4, 3, v0
    s_lshl_b32 s22, s2, 11
    buffer_store_dwordx2 v[2:3], v4, s[4:7], s22 offen
    v_lshlrev_b32 v5, 4, v1          ; lane*16
    v_bfe_u32 v6, v1, 2, 2           ; r
    v_and_b32 v7, 3, v1              ; cc
    v_lshrrev_b32 v8, 3, v1
    v_and_b32 v9, 7, v1
    s_lshl_b32 s23, s20, 12
    s_cmp_ge_u32 s21, 576
    s_cbranch_scc1 P_w1
    ''')
    a('''
    s_cmp_ge_u32 s21, 128
    s_cbranch_scc1 P_w2
    ''')
    srd(a, 8, 42, 512*1024)
    a(f'''
    s_lshr_b32 s24, s21, 3           ; kb32
    s_and_b32 s25, s21, 7            ; c
    s_mul_i32 s26, s25, {32*2*1024}
    s_add_u32 s26, s26, {WOC}
    s_mov_b32 s27, 4
    s_mov_b32 s28, {8*128}
    s_branch P_c32
    P_w2:
    ''')
    srd(a, 8, 46, 1792*1024)
    a(f'''
    s_sub_u32 s24, s21, 128
    s_and_b32 s25, s24, 7
    s_lshr_b32 s24, s24, 3
    s_mul_i32 s26, s25, {112*2*1024}
    s_add_u32 s26, s26, {W2C}
    s_mov_b32 s27, 8
    s_mov_b32 s28, {4*128}
    P_c32:
    s_lshl_b32 s29, s24, 12
    s_add_u32 s26, s26, s29
    v_lshlrev_b32 v10, 10, v8
    v_lshl_add_u32 v10, v9, 4, v10   ; voffset
    s_lshl_b32 s29, s24, 15
    s_lshl_b32 s30, s25, 7
    s_add_u32 s29, s29, s30
    ''')
    for i in range(4):
        a(f's_add_u32 s31, s23, {i*1024}\ns_mov_b32 m0, s31\ns_add_u32 s32, s29, {i*8*1024}')
        a('buffer_load_dwordx4 v10, s[8:11], s32 offen lds')
    a('''
    v_lshrrev_b32 v11, 5, v1         ; h
    v_mul_lo_u32 v11, v11, s27
    v_add_u32 v11, v11, v6           ; row
    v_lshlrev_b32 v11, 7, v11
    v_bfe_u32 v12, v1, 4, 1
    v_lshl_add_u32 v11, v12, 5, v11
    v_lshl_add_u32 v11, v7, 3, v11
    v_add_u32 v11, s23, v11
    v_add_u32 v12, s28, v11
    s_waitcnt vmcnt(0)
    ''')
    for kbl in range(2):
        for ft in range(2):
            r = 16 + (kbl*2+ft)*4
            a(f'ds_read_b64_tr_b16 v[{r}:{r+1}], v11 offset:{kbl*2048+ft*64}')
            a(f'ds_read_b64_tr_b16 v[{r+2}:{r+3}], v12 offset:{kbl*2048+ft*64}')
    a('s_waitcnt lgkmcnt(0)')
    for i in range(4):
        a(f'buffer_store_dwordx4 v[{16+4*i}:{19+4*i}], v5, s[4:7], s26 offen offset:{i*1024}')
    a('s_branch P_done')
    a('P_w1:')
    srd(a, 8, 44, 512*3584)
    a(f'''
    s_sub_u32 s24, s21, 576
    s_mul_i32 s25, s24, 2341
    s_lshr_b32 s25, s25, 16          ; kb32 = i/28
    s_mul_i32 s26, s25, 28
    s_sub_u32 s26, s24, s26          ; cb
    v_mul_u32_u24 v10, 3584, v8
    v_lshl_add_u32 v10, v9, 4, v10
    s_mul_i32 s29, s25, {32*3584}
    s_lshl_b32 s30, s26, 7
    s_add_u32 s29, s29, s30
    ''')
    for i in range(4):
        a(f's_add_u32 s31, s23, {i*1024}\ns_mov_b32 m0, s31\ns_add_u32 s32, s29, {i*8*3584}')
        a('buffer_load_dwordx4 v10, s[8:11], s32 offen lds')
    a('''
    v_lshrrev_b32 v11, 4, v1
    v_lshl_add_u32 v11, v11, 3, v6
    v_lshlrev_b32 v11, 7, v11
    v_lshl_add_u32 v11, v7, 3, v11
    v_add_u32 v11, s23, v11
    v_mov_b32 v32, 0x3f803f80
    v_mov_b32 v33, 0x3f803f80
    v_mov_b32 v34, 0x3f803f80
    v_mov_b32 v35, 0x3f803f80
    v_lshlrev_b32 v13, 2, v1
    s_waitcnt vmcnt(0)
    ''')
    for u in range(4):
        r = 16 + u*4
        a(f'ds_read_b64_tr_b16 v[{r}:{r+1}], v11 offset:{u*32}')
        a(f'ds_read_b64_tr_b16 v[{r+2}:{r+3}], v11 offset:{u*32+512}')
    a('s_waitcnt lgkmcnt(0)')
    for u in range(4):
        a(f'v_mfma_f32_16x16x32_bf16 v[{40+4*u}:{43+4*u}], v[32:35], v[{16+4*u}:{19+4*u}], 0')
    for u in range(4):
        a(f'''
        s_lshl_b32 s30, s26, 2
        s_add_u32 s30, s30, {u}          ; F
        s_mul_i32 s31, s30, 9363
        s_lshr_b32 s31, s31, 16          ; j = F/7
        s_mul_i32 s32, s31, 7
        s_sub_u32 s32, s30, s32          ; ft
        s_mul_i32 s31, s31, {16*7*1024}
        s_lshl_b32 s32, s32, 10
        s_add_u32 s31, s31, s32
        s_mul_i32 s32, s25, 7168
        s_add_u32 s31, s31, s32
        s_add_u32 s31, s31, {W1C}
        buffer_store_dwordx4 v[{16+4*u}:{19+4*u}], v5, s[4:7], s31 offen
        ''')
    a(f'''
    s_mul_i32 s31, s25, {1792*4}
    s_lshl_b32 s32, s26, 8
    s_add_u32 s31, s31, s32
    s_add_u32 s31, s31, {CS1}
    s_mov_b64 exec, 0xffff
    ''')
    for u in range(4):
        a(f'buffer_store_dword v{40+4*u}, v13, s[4:7], s31 offen offset:{u*64}')
    a('P_done:\ns_waitcnt vmcnt(0)\nP_end:')

V_L16=1; V_TR=2; V_WQ=3; V_XROW=4; V_F32=5; V_F16=6; V_STS=7; V_STL=8; V_ZERO=9; V_L4=10; V_ONE=11
V_RW=12; V_RR=13; V_H16=14; V_STL4=15
V_RES=16
V_AM=32
V_KA=40; V_VA=41; V_VD=42; V_KDUP=43; V_G16=44; V_T0=45; V_T1=46; V_T2=47
W0=48
S_M=64

def gen_main(a, stop=99):
    a.kernel('main_kernel', vgpr=512, sgpr=102, accum=256)
    vm = Ctr(a, 'vmcnt', 63); lg = Ctr(a, 'lgkmcnt', 15)
    a('''
    s_load_dwordx2 s[40:41], s[0:1], 64
    s_load_dwordx4 s[44:47], s[0:1], 0
    s_load_dwordx2 s[42:43], s[0:1], 48
    s_cmp_ge_u32 s2, 256
    s_cbranch_scc1 M_end
    v_lshrrev_b32 v1, 6, v0
    v_readfirstlane_b32 s20, v1
    v_and_b32 v0, 63, v0            ; lane
    s_and_b32 s30, s2, 7
    s_lshr_b32 s31, s2, 3
    s_and_b32 s22, s31, 15          ; j
    s_lshr_b32 s31, s31, 4
    s_lshl_b32 s21, s30, 1
    s_add_u32 s21, s21, s31         ; g
    s_lshr_b32 s23, s22, 3          ; half
    s_and_b32 s24, s22, 7           ; c
    s_mov_b32 s25, 0
    s_lshl_b32 s28, s21, 2
    s_lshl_b32 s29, s23, 1
    s_add_u32 s29, s29, s28         ; tbh
    s_add_u32 s28, s28, s20         ; tbw
    s_lshl_b32 s27, s21, 12
    s_mov_b32 s39, 0
    ''')
    a(f's_mov_b32 s26, {LB0}')
    a('s_waitcnt lgkmcnt(0)')
    srd(a, 4, 40, 0x10000000); srd(a, 8, 44, 2*MB); srd(a, 12, 46, 512*3072); srd(a, 16, 42, 2*MB)
    a(f'''
    v_lshlrev_b32 v{V_L16}, 4, v0
    v_lshlrev_b32 v{V_L4}, 2, v0
    v_mov_b32 v{V_ZERO}, 0
    v_mov_b32 v{V_ONE}, 1
    v_lshrrev_b32 v50, 2, v0
    v_mul_u32_u24 v{V_WQ}, 3072, v50
    v_and_b32 v51, 3, v0
    v_lshl_add_u32 v{V_WQ}, v51, 4, v{V_WQ}
    ''')
    def load_wqkv():
        a('s_mul_i32 s30, s20, 24576')
        a(f's_mul_i32 s31, s20, {128*3072}')
        a('s_lshl_b32 s32, s22, 6\ns_add_u32 s31, s31, s32')
        for al in range(2):
            for b in range(4):
                for seg in range(3):
                    a(f's_add_u32 s32, s30, {al*12288+seg*4096+b*1024}\ns_mov_b32 m0, s32')
                    a(f's_add_u32 s33, s31, {(al*4+b)*16*3072+seg*1024}')
                    a(f'buffer_load_dwordx4 v{V_WQ}, s[12:15], s33 offen lds'); vm.issue('wq')
    a(f'''
    v_and_b32 v50, 7, v0             ; tok8
    v_lshrrev_b32 v51, 3, v0         ; fg
    s_lshl_b32 s30, s20, 3
    v_add_u32 v52, s30, v50
    v_lshlrev_b32 v{V_XROW}, 10, v52
    v_lshl_add_u32 v{V_XROW}, v51, 4, v{V_XROW}
    s_lshl_b32 s30, s29, 15
    s_lshl_b32 s31, s24, 7
    s_add_u32 s30, s30, s31
    s_add_u32 s31, s30, 32768
    buffer_load_dwordx4 v[56:59], v{V_XROW}, s[8:11], s30 offen
    buffer_load_dwordx4 v[60:63], v{V_XROW}, s[8:11], s31 offen
    '''); vm.issue('x'); vm.issue('x')
    load_wqkv()
    a(f'''
    ; F32 offset
    v_lshrrev_b32 v53, 1, v51
    v_lshlrev_b32 v{V_F32}, 10, v53
    v_and_b32 v53, 1, v51
    v_lshl_add_u32 v53, v53, 5, v52
    v_lshl_add_u32 v{V_F32}, v53, 4, v{V_F32}
    ; F16 offset
    v_lshrrev_b32 v53, 4, v52
    v_lshlrev_b32 v{V_F16}, 14, v53
    v_lshrrev_b32 v53, 2, v51
    v_lshl_add_u32 v{V_F16}, v53, 10, v{V_F16}
    v_and_b32 v53, 3, v51
    v_and_b32 v54, 15, v52
    v_lshl_add_u32 v53, v53, 4, v54
    v_lshl_add_u32 v{V_F16}, v53, 4, v{V_F16}
    v_bfe_u32 v53, v0, 4, 1
    v_lshlrev_b32 v53, 2, v53
    v_lshl_add_u32 v{V_STS}, v52, 3, v53
    v_mul_u32_u24 v{V_RR}, {RSTR}, v52
    v_lshl_add_u32 v{V_RR}, v51, 5, v{V_RR}
    v_and_b32 v50, 31, v0
    v_lshrrev_b32 v51, 5, v0
    v_lshlrev_b32 v{V_STL}, 10, v51
    v_lshl_add_u32 v{V_STL}, v50, 3, v{V_STL}
    v_lshlrev_b32 v{V_H16}, 4, v51
    v_mul_u32_u24 v{V_RW}, {RSTR}, v50
    v_add_u32 v{V_RW}, v{V_H16}, v{V_RW}
    s_mul_i32 s30, s20, {RW}
    v_add_u32 v{V_RW}, s30, v{V_RW}
    v_lshlrev_b32 v{V_KDUP}, 9, v51
    v_lshlrev_b32 v{V_TR}, 9, v51
    v_bfe_u32 v53, v0, 2, 2
    v_lshl_add_u32 v{V_TR}, v53, 6, v{V_TR}
    v_bfe_u32 v53, v0, 4, 1
    v_lshl_add_u32 v{V_TR}, v53, 5, v{V_TR}
    v_and_b32 v53, 3, v0
    v_lshl_add_u32 v{V_TR}, v53, 3, v{V_TR}
    ; 16-layout
    v_and_b32 v53, 15, v0
    v_lshrrev_b32 v54, 4, v0
    v_lshlrev_b32 v{V_STL4}, 9, v54
    v_lshl_add_u32 v{V_STL4}, v53, 3, v{V_STL4}
    v_lshlrev_b32 v{V_G16}, 4, v54
    s_mul_i32 s30, s20, {SLOT}
    s_add_u32 s30, s30, {L_KV}
    v_add_u32 v{V_KA}, s30, v{V_L16}
    v_add_u32 v{V_VA}, 2048, v{V_KA}
    s_add_u32 s31, s30, 3072
    v_mov_b32 v55, s31
    v_and_b32 v53, 16, v0
    v_cmp_eq_u32 vcc, 0, v53
    v_cndmask_b32 v{V_VA}, v55, v{V_VA}, vcc
    v_mov_b32 v55, 256
    v_cndmask_b32 v{V_VD}, 0, v55, vcc
    ''')
    a('v_lshlrev_b32 v53, 2, v51\nv_sub_u32 v53, v50, v53')
    for r in range(16):
        key = (r & 3) + 8*(r >> 2)
        a(f'v_cmp_le_i32 s[{S_M+2*r}:{S_M+2*r+1}], {key}, v53')
    a('v_mov_b32 v54, 0xffff\nv_mov_b32 v55, 0xffff0000')
    for i in range(8):
        a(f'v_cndmask_b32 v52, 0, v54, s[{S_M+4*i}:{S_M+4*i+1}]')
        a(f'v_cndmask_b32 v{V_AM+i}, 0, v55, s[{S_M+4*i+2}:{S_M+4*i+3}]')
        a(f'v_or_b32 v{V_AM+i}, v52, v{V_AM+i}')

    def signal(off_expr_sgpr, dword_sgpr):
        pass

    def publish(t, src, fmt, final=False):
        T = 232
        for i in range(4):
            a(f'v_cvt_pk_bf16_f32 v{T+i}, v{src+2*i}, v{src+2*i+1}')
        if final:
            a(f's_add_u32 s30, s29, {t}\ns_lshl_b32 s30, s30, 15\ns_lshl_b32 s31, s24, 7\ns_add_u32 s30, s30, s31')
            a(f'buffer_store_dwordx4 v[{T}:{T+3}], v{V_XROW}, s[16:19], s30 offen'); vm.issue('st')
            return
        a(f's_add_u32 s32, s29, {t}\ns_lshl_b32 s30, s32, 15')
        if fmt == 'F32':
            a(f's_lshl_b32 s31, s24, 12\ns_add_u32 s30, s30, s31\ns_add_u32 s30, s30, s34')
            a(f'buffer_store_dwordx4 v[{T}:{T+3}], v{V_F32}, s[4:7], s30 offen sc1'); vm.issue('st')
            sb = XS - XF
        else:
            a(f's_lshl_b32 s31, s24, 11\ns_add_u32 s30, s30, s31\ns_add_u32 s30, s30, s34')
            a(f'buffer_store_dwordx4 v[{T}:{T+3}], v{V_F16}, s[4:7], s30 offen sc1'); vm.issue('st')
            sb = X2S - X2F
        S, Q = T+4, T+5
        a(f'v_add_f32 v{S}, v{src}, v{src+1}\nv_mul_f32 v{Q}, v{src}, v{src}')
        for i in range(2, 8): a(f'v_add_f32 v{S}, v{S}, v{src+i}')
        for i in range(1, 8): a(f'v_fmac_f32 v{Q}, v{src+i}, v{src+i}')
        a(f'v_add_f32_dpp v{S}, v{S}, v{S} row_ror:8 row_mask:0xf bank_mask:0xf')
        a(f'v_add_f32_dpp v{Q}, v{Q}, v{Q} row_ror:8 row_mask:0xf bank_mask:0xf')
        a(f'v_permlane16_swap_b32 v{S}, v{Q}')
        a(f'v_add_f32 v{S}, v{S}, v{Q}')
        a(f'v_mov_b32 v{Q}, v{S}')
        a(f'v_permlane32_swap_b32 v{S}, v{Q}')
        a(f'v_add_f32 v{S}, v{S}, v{Q}')
        a(f's_lshl_b32 s30, s32, 11\ns_lshl_b32 s31, s24, 8\ns_add_u32 s30, s30, s31\ns_add_u32 s30, s30, s34\ns_add_u32 s30, s30, {sb}')
        a('s_mov_b64 exec, 0xff00ff')
        a(f'buffer_store_dword v{S}, v{V_STS}, s[4:7], s30 offen sc1'); vm.issue('st')
        a('s_mov_b64 exec, -1')

    def sync(kind, sig_mask_lanes, sig_dword_sgpr, poll_mask, base='s27', next_layer=False):
        vm.wait('st')
        a('s_barrier')
        off = kind*512 + (16*4096 if next_layer else 0)
        l1 = a.label('S'); l2 = a.label('S'); lp = a.label('S')
        a(f's_add_u32 s35, {base}, {off}')
        a(f's_cmp_lg_u32 s20, 0\ns_cbranch_scc1 {l1}')
        a(f's_lshl_b32 s30, {sig_dword_sgpr}, 2\ns_add_u32 s30, s30, s35')
        a(f's_mov_b64 exec, {hex(sig_mask_lanes)}')
        a(f'buffer_store_dword v{V_ONE}, v{V_L4}, s[4:7], s30 offen')
        a(f'buffer_store_dword v{V_ONE}, v{V_L4}, s[4:7], s30 offen offset:256 sc1')
        a('s_mov_b64 exec, -1')
        a(f'{l1}:')
        a(f's_cmp_lg_u32 s20, 1\ns_cbranch_scc1 {l2}')
        a(f's_mov_b64 exec, {hex(poll_mask)}')
        a(f'{lp}:')
        for o in (0, 0, 0, 256):
            a(f'buffer_load_dword v{V_T0}, v{V_L4}, s[4:7], s35 offen offset:{o} sc1')
            a('s_waitcnt vmcnt(0)')
            a(f'v_cmp_ne_u32 vcc, v{V_ONE}, v{V_T0}')
            a(f's_cbranch_vccz {l2}')
        a(f's_add_u32 s39, s39, 1\ns_cmp_lt_u32 s39, 50000\ns_cbranch_scc1 {lp}')
        a(f'{l2}:')
        a('s_mov_b64 exec, -1')
        a('s_barrier')

    vm.wait('x')
    for t in range(2):
        for i in range(4):
            a(f'v_lshlrev_b32 v{V_RES+8*t+2*i}, 16, v{56+4*t+i}')
            a(f'v_and_b32 v{V_RES+8*t+2*i+1}, 0xffff0000, v{56+4*t+i}')
    a(f's_add_u32 s34, s26, {XF}')
    publish(0, V_RES, 'F32'); publish(1, V_RES+8, 'F32')
    vm.wait_all()
    ONES = 48
    for i in range(4): a(f'v_mov_b32 v{ONES+i}, 0x3f803f80')
    a('s_mul_i32 s30, s20, 24576')
    a(f'v_add_u32 v52, s30, v{V_TR}')
    for seg in range(3):
        for n in range(8):
            al, b = n >> 2, n & 3
            r = 64 + (n % 4) * 4
            off = al*12288 + seg*4096 + b*1024
            a(f'ds_read_b64_tr_b16 v[{r}:{r+1}], v52 offset:{off}')
            a(f'ds_read_b64_tr_b16 v[{r+2}:{r+3}], v52 offset:{off+256}')
            a('s_waitcnt lgkmcnt(0)')
            a(f'v_mfma_f32_32x32x16_bf16 v[{96+16*seg}:{111+16*seg}], v[{ONES}:{ONES+3}], v[{r}:{r+3}], {"0" if n == 0 else f"v[{96+16*seg}:{111+16*seg}]"}')
    a(f's_mul_i32 s30, s20, 384\ns_add_u32 s30, s30, {T_CQ}')
    a(f'v_add_u32 v52, s30, v{V_L4}')
    a('s_mov_b64 exec, 0xffffffff')
    for seg in range(3):
        a(f'ds_write_b32 v52, v{96+16*seg} offset:{seg*128}')
    a('s_mov_b64 exec, -1')
    a(f's_lshl_b32 s30, s20, 8\nv_add_u32 v52, s30, v{V_L4}')
    a(f's_mul_i32 s30, s22, 448\ns_add_u32 s30, s30, {CS1}')
    for i in range(16):
        a(f's_add_u32 s31, s30, {i*7168}')
        a(f'buffer_load_dword v{64+i}, v52, s[4:7], s31 offen')
    a('s_waitcnt vmcnt(0)')
    for i in range(1, 16): a(f'v_add_f32 v64, v64, v{64+i}')
    a(f'v_cmp_gt_u32 vcc, 448, v52\ns_and_saveexec_b64 s[96:97], vcc')
    a(f'ds_write_b32 v52, v64 offset:{T_C1 - 0x20000 if False else 0}' if False else f'v_add_u32 v52, {T_C1}, v52\nds_write_b32 v52, v64')
    a('s_mov_b64 exec, -1')
    a(f's_mul_i32 s30, s24, {112*2048}\ns_mul_i32 s31, s20, {28*2048}\ns_add_u32 s30, s30, s31\ns_add_u32 s30, s30, {W2C}')
    for i in range(56):
        if i % 4 == 0 and i: a('s_add_u32 s30, s30, 4096')
        a(f'buffer_load_dwordx4 a[{4*i}:{4*i+3}], v{V_L16}, s[4:7], s30 offen offset:{(i%4)*1024}')
    a('s_waitcnt vmcnt(0) lgkmcnt(0)')
    a('s_lshl_b32 s36, s23, 4\ns_add_u32 s36, s36, s24')
    vm.issue('st')
    sync(0, 0x101, 's36', 0xffffffff)
    a(f's_lshl_b32 s30, s20, 8\nv_add_u32 v52, s30, v{V_L4}')
    a(f'v_cmp_gt_u32 vcc, 384, v52\ns_and_saveexec_b64 s[96:97], vcc')
    a(f'v_add_u32 v52, {T_CQ}, v52')
    for i in range(4): a(f'ds_read_b32 v{64+i}, v52 offset:{i*384}')
    a('s_waitcnt lgkmcnt(0)')
    a('v_add_f32 v64, v64, v65\nv_add_f32 v66, v66, v67\nv_add_f32 v64, v64, v66')
    a('ds_write_b32 v52, v64')
    a('s_mov_b64 exec, -1\ns_waitcnt lgkmcnt(0)\ns_barrier')

    a('M_layer:')
    XR = 48; NX = 16; WB = 112; ACC = 136; ST = 184; CT = 192
    a(f's_lshl_b32 s30, s28, 11\ns_add_u32 s30, s30, s26\ns_add_u32 s30, s30, {XS}')
    for i in range(4):
        a(f'buffer_load_dwordx2 v[{ST+2*i}:{ST+2*i+1}], v{V_STL}, s[4:7], s30 offen offset:{i*256} sc1'); vm.issue('stat')
    a(f's_lshl_b32 s37, s28, 15\ns_add_u32 s37, s37, s26\ns_add_u32 s37, s37, {XF}')
    def xload(i):
        if i % 4 == 0:
            a(f's_xor_b32 s38, s24, {i//4}\ns_lshl_b32 s38, s38, 12\ns_add_u32 s38, s38, s37')
        r = XR + 4*(i % NX)
        a(f'buffer_load_dwordx4 v[{r}:{r+3}], v{V_L16}, s[4:7], s38 offen offset:{(i%4)*1024} sc1'); vm.issue(('x', i))
    def wread(i):
        if i % 4 == 0:
            a(f's_xor_b32 s33, s24, {i//4}\ns_mul_i32 s33, s33, 12288\nv_add_u32 v{V_T1}, s33, v{V_TR}')
        for seg in range(3):
            r = WB + (i % 2)*12 + seg*4
            off = seg*4096 + (i % 4)*1024
            a(f'ds_read_b64_tr_b16 v[{r}:{r+1}], v{V_T1} offset:{off}'); lg.issue(('w', i))
            a(f'ds_read_b64_tr_b16 v[{r+2}:{r+3}], v{V_T1} offset:{off+256}'); lg.issue(('w', i))
    for i in range(NX): xload(i)
    a(f'''
    v_lshrrev_b32 v{CT}, 1, v0
    v_mul_u32_u24 v{CT+1}, {SLOT}, v{CT}
    v_and_b32 v{CT+2}, 1, v0
    v_mul_u32_u24 v{CT+2}, 1056, v{CT+2}
    v_add_u32 v{CT+1}, v{CT+1}, v{CT+2}
    v_add_u32 v{CT+1}, {L_KV+3072}, v{CT+1}
    s_lshl_b32 s30, s21, 2
    v_add_u32 v{CT}, s30, v{CT}
    v_mov_b32 v{CT+2}, 0x3f803f80
    v_cmp_le_u32 vcc, 8, v{CT}
    v_cndmask_b32 v{CT+4}, 0, v{CT+2}, vcc
    v_mov_b32 v{CT+5}, v{CT+4}
    v_mov_b32 v{CT+6}, v{CT+4}
    v_mov_b32 v{CT+7}, v{CT+4}
    s_mov_b64 exec, 0xffffff
    ds_write_b128 v{CT+1}, v[{CT+4}:{CT+7}]
    s_mov_b64 exec, -1
    s_waitcnt lgkmcnt(0)
    ''')
    wread(0)
    for i in range(32):
        if i + 1 < 32: wread(i+1)
        vm.wait(('x', i)); lg.wait(('w', i))
        x = XR + 4*(i % NX); wb = WB + (i % 2)*12
        for seg in range(3):
            c = '0' if i == 0 else v(ACC+16*seg, 16)
            if seg < 2: a(f'v_mfma_f32_32x32x16_bf16 {v(ACC+16*seg,16)}, {v(wb+4*seg,4)}, {v(x,4)}, {c}')
            else: a(f'v_mfma_f32_32x32x16_bf16 {v(ACC+16*seg,16)}, {v(x,4)}, {v(wb+4*seg,4)}, {c}')
        if i + NX < 32: xload(i + NX)
    def finish_stats(S, Q, A, B):
        a(f'v_mul_f32 v{S}, {1/512}, v{S}' if False else f'v_mul_f32 v{S}, 0x3b000000, v{S}')
        a(f'v_mul_f32 v{Q}, 0x3b000000, v{Q}')
        a(f'v_fma_f32 v{Q}, -v{S}, v{S}, v{Q}')
        a(f'v_max_f32 v{Q}, 0, v{Q}')
        a(f'v_add_f32 v{Q}, {hex(f2u(1e-5))}, v{Q}')
        a(f'v_rsq_f32 v{A}, v{Q}')
        a(f'v_mul_f32 v{B}, v{S}, v{A}')
        a(f'v_sub_f32 v{B}, 0, v{B}')
    for k in range(2):
        a(f'v_add_f32 v{ST+k}, v{ST+k}, v{ST+2+k}\nv_add_f32 v{ST+4+k}, v{ST+4+k}, v{ST+6+k}\nv_add_f32 v{ST+k}, v{ST+k}, v{ST+4+k}')
        a(f'v_mov_b32 v{ST+2+k}, v{ST+k}')
        a(f'v_permlane32_swap_b32 v{ST+k}, v{ST+2+k}')
        a(f'v_add_f32 v{ST+k}, v{ST+k}, v{ST+2+k}')
    A_, B_ = ST+4, ST+5
    finish_stats(ST, ST+1, A_, B_)
    a(f's_lshl_b32 s30, s20, 8\ns_add_u32 s30, s30, {T_AB}')
    a(f'v_add_u32 v{V_T1}, s30, v{V_L4}')
    a(f'v_cmp_gt_u32 vcc, 32, v0\nv_cndmask_b32 v{ST+6}, v{B_}, v{A_}, vcc')
    a(f'ds_write_b32 v{V_T1}, v{ST+6}')
    a(f'v_add_u32 v{V_T1}, s30, v{V_H16}')
    a(f'v_add_u32 v{V_T2}, {T_CQ}, v{V_H16}')
    TA, TBb, CQ_, CK_ = 48, 64, 80, 96
    for q in range(4):
        a(f'ds_read_b128 {v(CK_+4*q,4)}, v{V_T2} offset:{128+q*32}')
        a(f'ds_read_b128 {v(CQ_+4*q,4)}, v{V_T2} offset:{q*32}')
    a(f'v_and_b32 v{V_T2}, 124, v{V_L4}\nv_add_u32 v{V_T2}, {T_CQ+256}, v{V_T2}')
    a(f'ds_read_b32 v{ST+7}, v{V_T2}')
    a('s_waitcnt lgkmcnt(0)')
    for q in range(4):
        a(f'ds_read_b128 {v(TA+4*q,4)}, v{V_T1} offset:{q*32}')
        a(f'ds_read_b128 {v(TBb+4*q,4)}, v{V_T1} offset:{128+q*32}')
    KV_ = 112
    for r in range(16):
        a(f'v_mul_f32 v{CK_+r}, v{B_}, v{CK_+r}\nv_fmac_f32 v{CK_+r}, v{A_}, v{ACC+16+r}')
    for i in range(8): a(f'v_cvt_pk_bf16_f32 v{KV_+i}, v{CK_+2*i}, v{CK_+2*i+1}')
    a('s_waitcnt lgkmcnt(0)')
    for r in range(16):
        a(f'v_mul_f32 v{TBb+r}, v{ST+7}, v{TBb+r}\nv_fmac_f32 v{TBb+r}, v{TA+r}, v{ACC+32+r}')
    for i in range(8): a(f'v_cvt_pk_bf16_f32 v{KV_+8+i}, v{TBb+2*i}, v{TBb+2*i+1}')
    a(f's_lshl_b32 s30, s22, 18\ns_lshl_b32 s31, s28, 12\ns_add_u32 s30, s30, s31\ns_add_u32 s30, s30, s26\ns_add_u32 s30, s30, {KVO}')
    for i in range(4):
        a(f'buffer_store_dwordx4 {v(KV_+4*i,4)}, v{V_L16}, s[4:7], s30 offen offset:{i*1024} sc1'); vm.issue('st')
    for i, o in enumerate((0, 1024, 2048, 3104)):
        a(f'ds_write_b128 v{V_KA}, {v(KV_+4*i,4)} offset:{8*SLOT+o}')
    sc = hex(f2u(0.25*LOG2E))
    a(f'v_mul_f32 v{A_}, {sc}, v{A_}\nv_mul_f32 v{B_}, {sc}, v{B_}')
    for r in range(16):
        a(f'v_mul_f32 v{CQ_+r}, v{B_}, v{CQ_+r}\nv_fmac_f32 v{CQ_+r}, v{A_}, v{ACC+r}')
    QP = 128
    for i in range(8): a(f'v_cvt_pk_bf16_f32 v{QP+i}, v{CQ_+2*i}, v{CQ_+2*i+1}')
    vm.wait('st'); a('s_waitcnt lgkmcnt(0)')
    a('s_barrier')
    l1 = a.label('K'); l2 = a.label('K'); lp = a.label('K')
    a(f's_lshl_b32 s30, s25, 8\ns_lshl_b32 s31, s21, 4\ns_add_u32 s30, s30, s31\ns_add_u32 s30, s30, s22\ns_lshl_b32 s30, s30, 7\ns_add_u32 s35, s30, {FKV}')
    a(f's_cmp_lg_u32 s20, 0\ns_cbranch_scc1 {l1}')
    a(f's_mov_b64 exec, 1\nbuffer_store_dword v{V_ONE}, v{V_ZERO}, s[4:7], s35 offen sc1\ns_mov_b64 exec, -1')
    a(f'{l1}:')
    a(f's_cmp_lg_u32 s20, 1\ns_cbranch_scc1 {l2}')
    a(f's_cmp_eq_u32 s21, 0\ns_cbranch_scc1 {l2}')
    a(f's_sub_u32 s35, s35, 4096\nv_lshlrev_b32 v{V_T1}, 11, v0')
    a('s_cmp_eq_u32 s21, 1\ns_cselect_b32 s30, 2, 3\ns_mov_b32 s31, 0\ns_mov_b64 exec, s[30:31]')
    a(f'{lp}:')
    a(f'buffer_load_dword v{V_T0}, v{V_T1}, s[4:7], s35 offen sc1')
    a('s_waitcnt vmcnt(0)')
    a(f'v_cmp_ne_u32 vcc, v{V_ONE}, v{V_T0}')
    a(f's_cbranch_vccz {l2}')
    a(f's_add_u32 s39, s39, 1\ns_cmp_lt_u32 s39, 200000\ns_cbranch_scc1 {lp}')
    a(f'{l2}:')
    a('s_mov_b64 exec, -1\ns_barrier')
    lv = a.label('K'); ld = a.label('K')
    a(f's_lshl_b32 s30, s22, 18\ns_add_u32 s30, s30, s26\ns_add_u32 s30, s30, {KVO}')
    a('s_lshl_b32 s31, s21, 2\ns_lshl_b32 s32, s20, 1\ns_add_u32 s31, s31, s32')
    a(f's_mul_i32 s32, s20, {2*SLOT}\ns_add_u32 s32, s32, {L_KV}')
    a(f's_cmp_ge_u32 s31, 8\ns_cbranch_scc1 {lv}')
    a(f'v_mov_b32 v{V_T2}, 0x7ff00000')
    for sl in range(2):
        for i, o in enumerate((0, 1024, 2048, 3104)):
            a(f's_add_u32 s33, s32, {sl*SLOT+o}\ns_mov_b32 m0, s33')
            if i < 2:
                a(f's_add_u32 s33, s30, {i*1024}')
                a(f'buffer_load_dwordx4 v{V_KDUP}, s[4:7], s33 offen sc1 lds')
            else:
                a(f'buffer_load_dwordx4 v{V_T2}, s[4:7], 0 offen sc1 lds')
    a(f's_branch {ld}')
    a(f'{lv}:')
    a('s_sub_u32 s31, s31, 8\ns_lshl_b32 s31, s31, 12\ns_add_u32 s30, s30, s31')
    for sl in range(2):
        for i, o in enumerate((0, 1024, 2048, 3104)):
            a(f's_add_u32 s33, s32, {sl*SLOT+o}\ns_mov_b32 m0, s33')
            a(f's_add_u32 s33, s30, {sl*4096+i*1024}')
            a(f'buffer_load_dwordx4 v{V_L16}, s[4:7], s33 offen sc1 lds')
    a(f'{ld}:')
    a('s_waitcnt vmcnt(0)\ns_barrier')
    WO_ = 192
    a(f's_lshl_b32 s30, s24, 16\ns_lshl_b32 s31, s20, 14\ns_add_u32 s30, s30, s31\ns_add_u32 s30, s30, {WOC}')
    for i in range(16):
        if i % 4 == 0 and i: a('s_add_u32 s30, s30, 4096')
        a(f'buffer_load_dwordx4 {v(WO_+4*i,4)}, v{V_L16}, s[4:7], s30 offen offset:{(i%4)*1024}')
    def load_w1(lo, hi):
        n = (hi - lo) // 4
        a(f's_mul_i32 s30, s20, {n*1024}\ns_add_u32 s30, s30, {lo*1024}')
        a(f's_mul_i32 s31, s22, {112*1024}\ns_add_u32 s31, s31, s30\ns_add_u32 s31, s31, {W1C}')
        for i in range(n):
            if i % 4 == 0:
                a('s_mov_b32 m0, s30')
            a(f'buffer_load_dwordx4 v{V_L16}, s[4:7], s31 offen offset:{(i%4)*1024} lds')
            if i % 4 == 3: a('s_add_u32 s30, s30, 4096\ns_add_u32 s31, s31, 4096')
    load_w1(0, 88)
    KF = 48; SB = 84; SM = 136; NEG = 152; PB = 168; OA = 176
    VF = 116
    a(f'v_mov_b32 v{V_T1}, v{V_KA}\nv_mov_b32 v{V_T2}, v{V_VA}')
    a('s_mov_b32 s38, 0')
    a('A_head:')
    for i in range(9): a(f'ds_read_b128 {v(KF+4*i,4)}, v{V_T1} offset:{i*SLOT}')
    a('s_waitcnt lgkmcnt(0)')
    MX = V_T0
    a(f'v_mfma_f32_32x32x16_bf16 {v(SB,16)}, {v(KF,4)}, {v(QP,4)}, 0')
    a(f'v_mfma_f32_32x32x16_bf16 {v(SM,16)}, {v(KF+32,4)}, {v(QP,4)}, 0')
    a(f'v_mfma_f32_32x32x16_bf16 {v(SB+16,16)}, {v(KF+4,4)}, {v(QP,4)}, 0')
    for r in range(16):
        a(f'v_cndmask_b32 v{SM+r}, v{SB+r}, v{SM+r}, s[{S_M+2*r}:{S_M+2*r+1}]')
    a(f'v_max_f32 v{MX}, v{SM}, v{SM+1}')
    for i in range(1, 8): a(f'v_max3_f32 v{MX}, v{SM+2*i}, v{SM+2*i+1}, v{MX}')
    for blk in range(1, 8):
        if blk + 1 < 8:
            a(f'v_mfma_f32_32x32x16_bf16 {v(SB+16*((blk+1)%2),16)}, {v(KF+4*(blk+1),4)}, {v(QP,4)}, 0')
        b = SB + 16*(blk % 2)
        for i in range(8): a(f'v_max3_f32 v{MX}, v{b+2*i}, v{b+2*i+1}, v{MX}')
    a(f'v_mov_b32 v{NEG}, v{MX}\nv_permlane32_swap_b32 v{NEG}, v{MX}\nv_max_f32 v{MX}, v{NEG}, v{MX}')
    for r in range(16): a(f'v_sub_f32 v{NEG+r}, 0, v{MX}')
    a(f'v_mfma_f32_32x32x16_bf16 {v(SB+16,16)}, {v(KF+4,4)}, {v(QP,4)}, {v(NEG,16)}')
    def vread(blk, hf, r):
        a(f'ds_read_b128 {v(r,4)}, v{V_T2} offset:{blk*SLOT+hf*1056}')
    vread(0, 0, SB); vread(0, 1, SB+4); vread(8, 0, SB+8); vread(8, 1, SB+12)
    for r in range(16): a(f'v_sub_f32 v{SM+r}, v{SM+r}, v{MX}')
    for r in range(16): a(f'v_exp_f32 v{SM+r}, v{SM+r}')
    for i in range(8): a(f'v_cvt_pk_bf16_f32 v{PB+i}, v{SM+2*i}, v{SM+2*i+1}')
    for i in range(8):
        a(f'v_and_b32 v{SM+i}, v{V_AM+i}, v{PB+i}')
        a(f'v_xor_b32 v{SM+8+i}, v{SM+i}, v{PB+i}')
    a('s_waitcnt lgkmcnt(0)')
    a(f'v_mfma_f32_32x32x16_bf16 {v(OA,16)}, {v(SB,4)}, {v(SM+8,4)}, 0')
    a(f'v_mfma_f32_32x32x16_bf16 {v(OA,16)}, {v(SB+4,4)}, {v(SM+12,4)}, {v(OA,16)}')
    a(f'v_mfma_f32_32x32x16_bf16 {v(OA,16)}, {v(SB+8,4)}, {v(SM,4)}, {v(OA,16)}')
    a(f'v_mfma_f32_32x32x16_bf16 {v(OA,16)}, {v(SB+12,4)}, {v(SM+4,4)}, {v(OA,16)}')
    for blk in range(1, 8):
        b = SB + 16*(blk % 2)
        vread(blk, 0, VF); vread(blk, 1, VF+4)
        if blk + 1 < 8:
            a(f'v_mfma_f32_32x32x16_bf16 {v(SB+16*((blk+1)%2),16)}, {v(KF+4*(blk+1),4)}, {v(QP,4)}, {v(NEG,16)}')
        for r in range(16): a(f'v_exp_f32 v{b+r}, v{b+r}')
        for i in range(8): a(f'v_cvt_pk_bf16_f32 v{PB+i}, v{b+2*i}, v{b+2*i+1}')
        a('s_waitcnt lgkmcnt(0)')
        a(f'v_mfma_f32_32x32x16_bf16 {v(OA,16)}, {v(VF,4)}, {v(PB,4)}, {v(OA,16)}')
        a(f'v_mfma_f32_32x32x16_bf16 {v(OA,16)}, {v(VF+4,4)}, {v(PB+4,4)}, {v(OA,16)}')
    a(f'v_rcp_f32 v{MX}, v{OA+8}')
    for r in range(8): a(f'v_mul_f32 v{OA+r}, v{OA+r}, v{MX}')
    for i in range(4): a(f'v_cvt_pk_bf16_f32 v{SM+i}, v{OA+2*i}, v{OA+2*i+1}')
    a(f's_lshl_b32 s30, s28, 15\ns_lshl_b32 s31, s22, 11\ns_add_u32 s30, s30, s31\ns_lshl_b32 s31, s38, 10\ns_add_u32 s30, s30, s31\ns_add_u32 s30, s30, s26\ns_add_u32 s30, s30, {OF}')
    a(f'buffer_store_dwordx4 {v(SM,4)}, v{V_L16}, s[4:7], s30 offen sc1')
    for i in range(4): a(f'v_mov_b32 v{QP+i}, v{QP+4+i}')
    a(f'v_add_u32 v{V_T1}, 1024, v{V_T1}\nv_add_u32 v{V_T2}, v{V_VD}, v{V_T2}')
    a('s_add_u32 s38, s38, 1\ns_cmp_lt_u32 s38, 2\ns_cbranch_scc1 A_head')
    vm.q = ['st']
    sync(1, 1, 's22', 0xffff)
    OB = 48; AC = 112
    a(f's_lshl_b32 s30, s29, 15\ns_lshl_b32 s31, s20, 13\ns_add_u32 s30, s30, s31\ns_add_u32 s30, s30, s26\ns_add_u32 s30, s30, {OF}')
    for t in range(2):
        for k in range(8):
            if k % 4 == 0: a(f's_add_u32 s31, s30, {t*32768 + k*1024}')
            a(f'buffer_load_dwordx4 {v(OB+(t*8+k)*4,4)}, v{V_L16}, s[4:7], s31 offen offset:{(k%4)*1024} sc1'); vm.issue(('o', t, k))
    def red_write(t, buf):
        for ft in range(2):
            for q in range(4):
                a(f'ds_write_b128 v{V_T1}, {v(AC+(t*2+ft)*16+4*q,4)} offset:{ft*128+q*32}')
    def red_read(t, buf, D):
        a(f'v_add_u32 v{V_T2}, {buf}, v{V_RR}')
        for src in range(4):
            a(f'ds_read_b128 {v(D+src*8,4)}, v{V_T2} offset:{src*RW}')
            a(f'ds_read_b128 {v(D+src*8+4,4)}, v{V_T2} offset:{src*RW+16}')
        a('s_waitcnt lgkmcnt(0)')
        for i in range(8):
            a(f'v_add_f32 v{D+i}, v{D+i}, v{D+8+i}\nv_add_f32 v{D+16+i}, v{D+16+i}, v{D+24+i}')
            a(f'v_add_f32 v{D+i}, v{D+i}, v{D+16+i}\nv_add_f32 v{V_RES+8*t+i}, v{V_RES+8*t+i}, v{D+i}')
    for t in range(2):
        for k in range(8):
            vm.wait(('o', t, k))
            for ft in range(2):
                acc = v(AC+(t*2+ft)*16, 16)
                a(f'v_mfma_f32_32x32x16_bf16 {acc}, {v(WO_+(k*2+ft)*4,4)}, {v(OB+(t*8+k)*4,4)}, {"0" if k == 0 else acc}')
        a(f'v_add_u32 v{V_T1}, {(L_S0, L_S1)[t]}, v{V_RW}')
        red_write(t, None)
    a('s_waitcnt lgkmcnt(0)\ns_barrier')
    a(f's_add_u32 s34, s26, {X2F}')
    for t in range(2):
        red_read(t, (L_S0, L_S1)[t], 48)
        publish(t, V_RES+8*t, 'F16')
    a('s_barrier')
    load_w1(88, 112)
    a('s_waitcnt vmcnt(0)'); vm.q = ['st']
    sync(2, 0x101, 's36', 0xffffffff)
    X2 = 48; NX2 = 16; WB4 = 112; AC4 = 168; ST4 = 224
    a(f's_lshl_b32 s30, s28, 11\ns_add_u32 s30, s30, s26\ns_add_u32 s30, s30, {X2S}')
    for t16 in range(2):
        for cc in range(2):
            r = ST4 + (t16*2+cc)*2
            a(f'buffer_load_dwordx2 v[{r}:{r+1}], v{V_STL4}, s[4:7], s30 offen offset:{cc*256+t16*128} sc1'); vm.issue('stat')
    a(f's_lshl_b32 s37, s28, 15\ns_add_u32 s37, s37, s26\ns_add_u32 s37, s37, {X2F}')
    def x2load(i):
        if i % 2 == 0:
            a(f's_xor_b32 s38, s24, {i//2}\ns_lshl_b32 s38, s38, 11\ns_add_u32 s38, s38, s37\ns_add_u32 s32, s38, 16384')
        for t16 in range(2):
            r = X2 + 4*((2*i+t16) % NX2)
            a(f'buffer_load_dwordx4 {v(r,4)}, v{V_L16}, s[4:7], {("s38","s32")[t16]} offen offset:{(i%2)*1024} sc1'); vm.issue(('x', i))
    def w1read(i):
        if i % 2 == 0:
            a(f's_xor_b32 s33, s24, {i//2}\ns_mul_i32 s33, s33, 14336\nv_add_u32 v{V_T1}, s33, v{V_L16}')
        for ft in range(7):
            a(f'ds_read_b128 {v(WB4+(i%2)*28+ft*4,4)}, v{V_T1} offset:{(i%2)*7168+ft*1024}'); lg.issue(('w', i))
    for i in range(8): x2load(i)
    w1read(0)
    for i in range(16):
        if i + 1 < 16: w1read(i+1)
        vm.wait(('x', i)); lg.wait(('w', i))
        for ft in range(7):
            for t16 in range(2):
                acc = v(AC4+(ft*2+t16)*4, 4)
                a(f'v_mfma_f32_16x16x32_bf16 {acc}, {v(WB4+(i%2)*28+ft*4,4)}, {v(X2+4*((2*i+t16)%NX2),4)}, {"0" if i == 0 else acc}')
        if i + 8 < 16: x2load(i + 8)
    C1 = 48
    a(f'v_add_u32 v{V_T1}, {T_C1}, v{V_G16}')
    for ft in range(7): a(f'ds_read_b128 {v(C1+4*ft,4)}, v{V_T1} offset:{ft*64}')
    AB = 80
    for t16 in range(2):
        r = ST4 + t16*4
        for k in range(2):
            a(f'v_add_f32 v{r+k}, v{r+k}, v{r+2+k}')
            a(f'v_mov_b32 v{r+2+k}, v{r+k}\nv_permlane16_swap_b32 v{r+k}, v{r+2+k}\nv_add_f32 v{r+k}, v{r+k}, v{r+2+k}')
            a(f'v_mov_b32 v{r+2+k}, v{r+k}\nv_permlane32_swap_b32 v{r+k}, v{r+2+k}\nv_add_f32 v{r+k}, v{r+k}, v{r+2+k}')
        finish_stats(r, r+1, AB+2*t16, AB+2*t16+1)
    a('s_waitcnt lgkmcnt(0)')
    a(f's_mul_i32 s30, s28, {112*1024}\ns_mul_i32 s31, s22, 7168\ns_add_u32 s30, s30, s31\ns_add_u32 s30, s30, s26\ns_add_u32 s30, s30, {HF}\ns_add_u32 s31, s30, 4096')
    nl2e = hex(f2u(-LOG2E))
    for ft in range(7):
        T = 88 + (ft % 2)*16
        for t16 in range(2):
            for r in range(4):
                acc = AC4 + (ft*2+t16)*4 + r; z = T + t16*4 + r; e = T + 8 + (r % 4)
                a(f'v_mul_f32 v{z}, v{AB+2*t16+1}, v{C1+4*ft+r}\nv_fmac_f32 v{z}, v{AB+2*t16}, v{acc}')
                a(f'v_mul_f32 v{e}, {nl2e}, v{z}\nv_exp_f32 v{e}, v{e}\nv_add_f32 v{e}, 1.0, v{e}\nv_rcp_f32 v{e}, v{e}\nv_mul_f32 v{z}, v{z}, v{e}')
        P = T + 12
        a(f'v_cvt_pk_bf16_f32 v{P}, v{T}, v{T+1}\nv_cvt_pk_bf16_f32 v{P+1}, v{T+2}, v{T+3}')
        a(f'v_cvt_pk_bf16_f32 v{P+2}, v{T+4}, v{T+5}\nv_cvt_pk_bf16_f32 v{P+3}, v{T+6}, v{T+7}')
        a(f'v_permlane16_swap_b32 v{P}, v{P+2}\nv_permlane16_swap_b32 v{P+1}, v{P+3}')
        a(f'buffer_store_dwordx4 {v(P,4)}, v{V_L16}, s[4:7], {"s30" if ft < 4 else "s31"} offen offset:{(ft%4)*1024} sc1'); vm.issue('st')
    sync(3, 1, 's22', 0xffff)
    lq = a.label('Q')
    a(f's_cmp_lg_u32 s25, 0\ns_cbranch_scc1 {lq}')
    load_wqkv()
    a('s_waitcnt vmcnt(0)')
    a(f'{lq}:')
    vm.q = []
    HB = 48; NH = 16
    a(f's_mul_i32 s37, s29, {112*1024}\ns_mul_i32 s31, s20, {28*1024}\ns_add_u32 s37, s37, s31\ns_add_u32 s37, s37, s26\ns_add_u32 s37, s37, {HF}')
    def hload(n):
        t, k = divmod(n, 28)
        if k % 4 == 0: a(f's_add_u32 s38, s37, {t*112*1024 + k*1024}')
        a(f'buffer_load_dwordx4 {v(HB+4*(n%NH),4)}, v{V_L16}, s[4:7], s38 offen offset:{(k%4)*1024} sc1'); vm.issue(('h', n))
    for n in range(NH): hload(n)
    a(f'v_add_u32 v{V_T1}, {L_S1}, v{V_RW}')
    a(f's_add_u32 s34, s26, {LSTR+XF}')
    def fin(t):
        lf = a.label('F'); le = a.label('F')
        red_read(t, L_S1, 176)
        a(f's_cmp_lg_u32 s25, 0\ns_cbranch_scc1 {lf}')
        q0 = list(vm.q)
        publish(t, V_RES+8*t, 'F32')
        a(f's_branch {le}\n{lf}:')
        publish(t, V_RES+8*t, 'F32', final=True)
        a(f'buffer_load_dword v{V_T0}, v{V_ZERO}, s[4:7], 0 offen')
        a(f'{le}:')
        vm.q = q0 + ['st', 'st']
    for n in range(56):
        t, k = divmod(n, 28)
        vm.wait(('h', n))
        for ft in range(2):
            acc = v(AC+(t*2+ft)*16, 16)
            a(f'v_mfma_f32_32x32x16_bf16 {acc}, {a_((k*2+ft)*4,4)}, {v(HB+4*(n%NH),4)}, {"0" if k == 0 else acc}')
        if n + NH < 56: hload(n + NH)
        if n == 28: red_write(0, None)
        if n == 34: a('s_waitcnt lgkmcnt(0)\ns_barrier'); fin(0)
        if n == 44: a('s_barrier')
    red_write(1, None)
    a('s_waitcnt lgkmcnt(0)\ns_barrier')
    fin(1)
    a('s_cmp_lg_u32 s25, 0\ns_cbranch_scc1 M_done')
    sync(0, 0x101, 's36', 0xffffffff, next_layer=True)
    a(f's_mov_b32 s25, 1\ns_add_u32 s26, s26, {LSTR}\ns_add_u32 s27, s27, {16*4096}')
    a('s_branch M_layer')
    a('M_done:\ns_waitcnt vmcnt(0)')
    a('M_end:')

if __name__ == '__main__':
    a = Asm()
    a.launch('prep_kernel', 256, 256, lds=16384)
    a.launch('main_kernel', 256, 256, lds=163840)
    gen_prep(a)
    gen_main(a)
    out = sys.argv[1] if len(sys.argv) > 1 else 'interleave_layers__sliding_block__dense_activation_silu__prompt.s'
    a.write(out)
```

```python
import sys, struct
from asmfw import *
KB = 1024; MB = 1 << 20
FLAG = 0; FKV = 256*KB
WOC = 1*MB; W2C = WOC + 512*KB; W1C = W2C + 1792*KB; CS1 = W1C + 1792*KB; CSQ = CS1 + 128*KB
LB0 = 8*MB; LSTR = 32*MB
XF = 0; XS = 2*MB; KVO = 3*MB; OF = 7*MB; X2F = 9*MB; X2S = 11*MB; HF = 12*MB
DUMP = 200*MB
L_KV = 96*KB; SLOT = 4160
L_S0 = 88*KB; L_S1 = 122*KB; RSTR = 272; RW = 32*RSTR
L_TAB = 156*KB
T_AB = L_TAB
LOG2E = 1.4426950408889634
def f2u(x): return struct.unpack('<I', struct.pack('<f', x))[0]
MF = 'v_mfma_f32_32x32x16_bf16'

class Ctr:
    def __init__(self, a, name, mx): self.a = a; self.name = name; self.mx = mx; self.q = []
    def issue(self, tag=None): self.q.append(tag)
    def wait(self, tag):
        if tag not in self.q: return
        i = len(self.q) - 1 - self.q[::-1].index(tag)
        n = len(self.q) - 1 - i
        self.a(f's_waitcnt {self.name}({min(n, self.mx)})')
        self.q = self.q[i+1:]
    def wait_all(self):
        self.a(f's_waitcnt {self.name}(0)'); self.q = []

def srd(a, d, base, size):
    a(f's_mov_b32 s{d}, s{base}\ns_mov_b32 s{d+1}, s{base+1}\ns_mov_b32 s{d+2}, {hex(size)}\ns_mov_b32 s{d+3}, 0x00020000')

def gen_prep(a):
    a.kernel('prep_kernel', vgpr=64, sgpr=64)
    a('''
    s_load_dwordx2 s[40:41], s[0:1], 64
    s_load_dwordx2 s[42:43], s[0:1], 16
    s_load_dwordx2 s[44:45], s[0:1], 32
    s_load_dwordx2 s[46:47], s[0:1], 40
    s_load_dwordx2 s[48:49], s[0:1], 8
    s_cmp_ge_u32 s2, 352
    s_cbranch_scc1 P_end
    v_lshrrev_b32 v1, 6, v0
    v_readfirstlane_b32 s20, v1
    v_and_b32 v1, 63, v0            ; lane
    s_lshl_b32 s21, s2, 2
    s_add_u32 s21, s21, s20         ; item
    s_waitcnt lgkmcnt(0)
    ''')
    srd(a, 4, 40, 0x10000000)
    a('''
    v_mov_b32 v2, 0
    v_mov_b32 v3, 0
    v_lshlrev_b32 v4, 3, v0
    s_lshl_b32 s22, s2, 11
    buffer_store_dwordx2 v[2:3], v4, s[4:7], s22 offen
    v_lshlrev_b32 v5, 4, v1          ; lane*16
    v_bfe_u32 v6, v1, 2, 2           ; r
    v_and_b32 v7, 3, v1              ; cc
    v_lshrrev_b32 v8, 3, v1
    v_and_b32 v9, 7, v1
    s_lshl_b32 s23, s20, 12          ; lds base of wave
    s_cmp_ge_u32 s21, 576
    s_cbranch_scc1 P_w1
    s_cmp_ge_u32 s21, 128
    s_cbranch_scc1 P_w2
    ''')
    srd(a, 8, 42, 512*1024)
    a(f'''
    s_lshr_b32 s24, s21, 3           ; kb32
    s_and_b32 s25, s21, 7            ; c
    s_mul_i32 s26, s25, {32*2*1024}
    s_add_u32 s26, s26, {WOC}
    s_branch P_c32
    P_w2:
    ''')
    srd(a, 8, 46, 1792*1024)
    a(f'''
    s_sub_u32 s24, s21, 128
    s_and_b32 s25, s24, 7
    s_lshr_b32 s24, s24, 3
    s_mul_i32 s26, s25, {112*2*1024}
    s_add_u32 s26, s26, {W2C}
    P_c32:
    s_lshl_b32 s29, s24, 12
    s_add_u32 s26, s26, s29
    v_lshlrev_b32 v10, 10, v8
    v_lshl_add_u32 v10, v9, 4, v10   ; voffset
    s_lshl_b32 s29, s24, 15
    s_lshl_b32 s30, s25, 7
    s_add_u32 s29, s29, s30
    ''')
    for i in range(4):
        a(f's_add_u32 s31, s23, {i*1024}\ns_mov_b32 m0, s31\ns_add_u32 s32, s29, {i*8*1024}')
        a('buffer_load_dwordx4 v10, s[8:11], s32 offen lds')
    a('''
    v_lshrrev_b32 v11, 5, v1         ; h
    v_lshl_add_u32 v11, v11, 2, v6
    v_lshlrev_b32 v11, 7, v11
    v_bfe_u32 v12, v1, 4, 1
    v_lshl_add_u32 v11, v12, 5, v11
    v_lshl_add_u32 v11, v7, 3, v11
    v_add_u32 v11, s23, v11
    s_waitcnt vmcnt(0)
    ''')
    for kbl in range(2):
        for ft in range(2):
            r = 16 + (kbl*2+ft)*4
            a(f'ds_read_b64_tr_b16 v[{r}:{r+1}], v11 offset:{kbl*2048+ft*64}')
            a(f'ds_read_b64_tr_b16 v[{r+2}:{r+3}], v11 offset:{kbl*2048+ft*64+1024}')
    a('s_waitcnt lgkmcnt(0)')
    for i in range(4):
        a(f'buffer_store_dwordx4 v[{16+4*i}:{19+4*i}], v5, s[4:7], s26 offen offset:{i*1024}')
    a('s_branch P_done')
    a('P_w1:')
    a('s_cmp_ge_u32 s21, 1024\ns_cbranch_scc1 P_wq')
    srd(a, 8, 44, 512*3584)
    a(f'''
    s_sub_u32 s24, s21, 576
    s_mul_i32 s25, s24, 2341
    s_lshr_b32 s25, s25, 16          ; kb32 = i/28
    s_mul_i32 s26, s25, 28
    s_sub_u32 s26, s24, s26          ; cb
    s_mov_b32 s27, 3584
    s_mov_b32 s28, {CS1}
    s_branch P_c16
    P_wq:
    ''')
    srd(a, 8, 48, 512*3072)
    a(f'''
    s_sub_u32 s24, s21, 1024
    s_mul_i32 s25, s24, 2731
    s_lshr_b32 s25, s25, 16          ; kb32 = i/24
    s_mul_i32 s26, s25, 24
    s_sub_u32 s26, s24, s26          ; cb
    s_mov_b32 s27, 3072
    s_mov_b32 s28, {CSQ}
    P_c16:
    v_mul_lo_u32 v10, v8, s27
    v_lshl_add_u32 v10, v9, 4, v10
    s_mul_i32 s29, s25, s27
    s_lshl_b32 s29, s29, 5
    s_lshl_b32 s30, s26, 7
    s_add_u32 s29, s29, s30
    s_lshl_b32 s33, s27, 3
    ''')
    for i in range(4):
        a(f's_add_u32 s31, s23, {i*1024}\ns_mov_b32 m0, s31')
        a('buffer_load_dwordx4 v10, s[8:11], s29 offen lds')
        a('s_add_u32 s29, s29, s33')
    a('''
    v_lshrrev_b32 v11, 4, v1
    v_lshl_add_u32 v11, v11, 3, v6
    v_lshlrev_b32 v11, 7, v11
    v_lshl_add_u32 v11, v7, 3, v11
    v_add_u32 v11, s23, v11
    v_mov_b32 v32, 0x3f803f80
    v_mov_b32 v33, 0x3f803f80
    v_mov_b32 v34, 0x3f803f80
    v_mov_b32 v35, 0x3f803f80
    v_lshlrev_b32 v13, 2, v1
    v_lshrrev_b32 v14, 5, v1
    v_mul_u32_u24 v14, 3584, v14
    v_and_b32 v15, 31, v1
    v_lshl_add_u32 v14, v15, 4, v14
    s_waitcnt vmcnt(0)
    ''')
    for u in range(4):
        r = 16 + u*4
        a(f'ds_read_b64_tr_b16 v[{r}:{r+1}], v11 offset:{u*32}')
        a(f'ds_read_b64_tr_b16 v[{r+2}:{r+3}], v11 offset:{u*32+512}')
    a('s_waitcnt lgkmcnt(0)')
    for u in range(4):
        a(f'v_mfma_f32_16x16x32_bf16 v[{40+4*u}:{43+4*u}], v[32:35], v[{16+4*u}:{19+4*u}], 0')
    a('s_cmp_ge_u32 s21, 1024\ns_cbranch_scc1 P_cs')
    for u in range(4):
        a(f'''
        s_lshl_b32 s30, s26, 2
        s_add_u32 s30, s30, {u}          ; F
        s_mul_i32 s31, s30, 9363
        s_lshr_b32 s31, s31, 16          ; j = F/7
        s_mul_i32 s32, s31, 7
        s_sub_u32 s32, s30, s32          ; ft
        s_mul_i32 s31, s31, {112*1024}
        s_lshl_b32 s32, s32, 9
        s_add_u32 s31, s31, s32
        s_mul_i32 s32, s25, 7168
        s_add_u32 s31, s31, s32
        s_add_u32 s31, s31, {W1C}
        buffer_store_dwordx4 v[{16+4*u}:{19+4*u}], v14, s[4:7], s31 offen
        ''')
    a(f'''
    P_cs:
    s_mul_i32 s31, s25, s27
    s_lshl_b32 s31, s31, 1
    s_lshl_b32 s32, s26, 8
    s_add_u32 s31, s31, s32
    s_add_u32 s31, s31, s28
    s_mov_b64 exec, 0xffff
    s_nop 7
    ''')
    for u in range(4):
        a(f'buffer_store_dword v{40+4*u}, v13, s[4:7], s31 offen offset:{u*64}')
    a('P_done:\ns_waitcnt vmcnt(0)\nP_end:')

V_L16=1; V_TR=2; V_WQ=3; V_XROW=4; V_F32=5; V_W1A=6; V_STS=7; V_STL=8; V_ZERO=9; V_L4=10; V_ONE=11
V_RW=12; V_RR=13; V_H16=14; V_T3=15
V_RES=16
V_AM=32
V_KA=40; V_VA0=41; V_VA1=42; V_KDUP=43; V_T4=44; V_T0=45; V_T1=46; V_T2=47
S_M=64
A_CQ=224
A_C1=230
A_X=240
STAMPS = []

def xreg(i):
    return v(48+4*i, 4) if i < 28 else a_(A_X+4*(i-28), 4)

def gen_main(a, diag=False):
    def stamp(name):
        if not diag: return
        i = len(STAMPS); STAMPS.append(name); assert i < 24
        a(f's_memtime s[98:99]\ns_waitcnt lgkmcnt(0)\ns_mov_b32 s{40+i}, s98')
        lg.q = []
    def dump_stamps():
        if not diag: return
        for i in range(len(STAMPS)): a(f'v_writelane_b32 v{V_T1}, s{40+i}, {i}')
        a(f's_lshl_b32 s30, s2, 2\ns_add_u32 s30, s30, s20\ns_lshl_b32 s30, s30, 1\ns_add_u32 s30, s30, s25\ns_lshl_b32 s30, s30, 7\ns_add_u32 s30, s30, {DUMP}')
        a(f's_mov_b64 exec, 0xffffff\nbuffer_store_dword v{V_T1}, v{V_L4}, s[4:7], s30 offen\ns_mov_b64 exec, -1')
        vm.issue('dump')
    a.kernel('main_kernel', vgpr=512, sgpr=102, accum=256)
    vm = Ctr(a, 'vmcnt', 63); lg = Ctr(a, 'lgkmcnt', 15)
    a('''
    s_load_dwordx2 s[40:41], s[0:1], 64
    s_load_dwordx4 s[44:47], s[0:1], 0
    s_load_dwordx2 s[42:43], s[0:1], 48
    s_cmp_ge_u32 s2, 256
    s_cbranch_scc1 M_end
    v_lshrrev_b32 v1, 6, v0
    v_readfirstlane_b32 s20, v1
    v_and_b32 v0, 63, v0            ; lane
    s_and_b32 s30, s2, 7
    s_lshr_b32 s31, s2, 3
    s_and_b32 s22, s31, 15          ; j
    s_lshr_b32 s31, s31, 4
    s_lshl_b32 s21, s30, 1
    s_add_u32 s21, s21, s31         ; g
    s_lshr_b32 s23, s22, 3          ; half
    s_and_b32 s24, s22, 7           ; c
    s_mov_b32 s25, 0
    s_lshl_b32 s28, s21, 2
    s_lshl_b32 s29, s23, 1
    s_add_u32 s29, s29, s28         ; tbh
    s_add_u32 s28, s28, s20         ; tbw
    s_lshl_b32 s27, s21, 12
    s_mov_b32 s39, 0
    s_lshl_b32 s36, s23, 4
    s_add_u32 s36, s36, s24
    ''')
    a(f's_mov_b32 s26, {LB0}')
    a(f'''
    v_lshlrev_b32 v{V_L16}, 4, v0
    v_lshlrev_b32 v{V_L4}, 2, v0
    v_mov_b32 v{V_ZERO}, 0
    v_mov_b32 v{V_ONE}, 1
    v_lshrrev_b32 v50, 2, v0
    v_mul_u32_u24 v{V_WQ}, 3072, v50
    v_and_b32 v51, 3, v0
    v_lshl_add_u32 v{V_WQ}, v51, 4, v{V_WQ}
    v_and_b32 v50, 7, v0             ; tok8
    v_lshrrev_b32 v51, 3, v0         ; fg
    s_lshl_b32 s30, s20, 3
    v_add_u32 v52, s30, v50
    v_lshlrev_b32 v{V_XROW}, 10, v52
    v_lshl_add_u32 v{V_XROW}, v51, 4, v{V_XROW}
    s_lshl_b32 s30, s29, 15
    s_lshl_b32 s31, s24, 7
    s_add_u32 s30, s30, s31
    s_add_u32 s31, s30, 32768
    ''')
    a('s_waitcnt lgkmcnt(0)')
    srd(a, 8, 44, 2*MB)
    a(f'''
    buffer_load_dwordx4 v[56:59], v{V_XROW}, s[8:11], s30 offen
    buffer_load_dwordx4 v[60:63], v{V_XROW}, s[8:11], s31 offen
    '''); vm.issue('x'); vm.issue('x')
    srd(a, 4, 40, 0x10000000); srd(a, 12, 46, 512*3072); srd(a, 16, 42, 2*MB)
    stamp('start')
    def wq_items():
        items = []
        for n in range(8):
            for seg in range(3):
                def f(n=n, seg=seg):
                    if seg == 0:
                        a(f's_add_u32 s100, s21, {n}\ns_and_b32 s100, s100, 7')
                        a(f's_mul_i32 s101, s100, {64*3072}\ns_mul_i32 s100, s100, 12288')
                        a(f's_mul_i32 s33, s20, {16*3072}\ns_add_u32 s101, s101, s33\ns_lshl_b32 s33, s22, 6\ns_add_u32 s101, s101, s33')
                        a('s_lshl_b32 s33, s20, 10\ns_add_u32 s100, s100, s33')
                    else:
                        a('s_add_u32 s100, s100, 4096\ns_add_u32 s101, s101, 1024')
                    a('s_mov_b32 m0, s100')
                    a(f'buffer_load_dwordx4 v{V_WQ}, s[12:15], s101 offen lds'); vm.issue('wq')
                items.append(f)
        return items
    wq = wq_items()
    for f in wq[:3]: f()
    a(f'''
    v_lshrrev_b32 v53, 1, v51
    v_lshlrev_b32 v{V_F32}, 10, v53
    v_and_b32 v53, 1, v51
    v_lshl_add_u32 v53, v53, 5, v52
    v_lshl_add_u32 v{V_F32}, v53, 4, v{V_F32}
    v_bfe_u32 v53, v0, 4, 1
    v_lshlrev_b32 v53, 2, v53
    v_lshl_add_u32 v{V_STS}, v52, 3, v53
    v_mul_u32_u24 v{V_RR}, {RSTR}, v52
    v_lshl_add_u32 v{V_RR}, v51, 5, v{V_RR}
    v_and_b32 v50, 31, v0
    v_lshrrev_b32 v51, 5, v0
    v_lshlrev_b32 v{V_STL}, 10, v51
    v_lshl_add_u32 v{V_STL}, v50, 3, v{V_STL}
    v_lshlrev_b32 v{V_H16}, 4, v51
    v_mul_u32_u24 v{V_RW}, {RSTR}, v50
    v_add_u32 v{V_RW}, v{V_H16}, v{V_RW}
    s_mul_i32 s30, s20, {RW}
    v_add_u32 v{V_RW}, s30, v{V_RW}
    v_lshlrev_b32 v{V_KDUP}, 9, v51
    v_lshlrev_b32 v{V_TR}, 9, v51
    v_bfe_u32 v53, v0, 2, 2
    v_lshl_add_u32 v{V_TR}, v53, 6, v{V_TR}
    v_bfe_u32 v53, v0, 4, 1
    v_lshl_add_u32 v{V_TR}, v53, 5, v{V_TR}
    v_lshlrev_b32 v{V_W1A}, 9, v53
    v_and_b32 v53, 3, v0
    v_lshl_add_u32 v{V_TR}, v53, 3, v{V_TR}
    v_lshl_add_u32 v{V_W1A}, v51, 8, v{V_W1A}
    v_and_b32 v53, 15, v0
    v_lshl_add_u32 v{V_W1A}, v53, 4, v{V_W1A}
    s_mul_i32 s30, s20, {SLOT}
    s_add_u32 s30, s30, {L_KV}
    v_add_u32 v{V_KA}, s30, v{V_L16}
    v_add_u32 v{V_VA0}, 2048, v{V_KA}
    v_add_u32 v{V_VA1}, 2304, v{V_KA}
    s_add_u32 s31, s30, 3072
    v_mov_b32 v55, s31
    v_and_b32 v53, 16, v0
    v_cmp_eq_u32 vcc, 0, v53
    v_cndmask_b32 v{V_VA0}, v55, v{V_VA0}, vcc
    v_cndmask_b32 v{V_VA1}, v55, v{V_VA1}, vcc
    ''')
    a('v_lshlrev_b32 v53, 2, v51\nv_sub_u32 v53, v50, v53')
    for r in range(16):
        a(f'v_cmp_le_i32 s[{S_M+2*r}:{S_M+2*r+1}], {(r & 3) + 8*(r >> 2)}, v53')
    a('v_mov_b32 v54, 0xffff\nv_mov_b32 v55, 0xffff0000')
    for i in range(8):
        a(f'v_cndmask_b32 v52, 0, v54, s[{S_M+4*i}:{S_M+4*i+1}]')
        a(f'v_cndmask_b32 v{V_AM+i}, 0, v55, s[{S_M+4*i+2}:{S_M+4*i+3}]')
        a(f'v_or_b32 v{V_AM+i}, v52, v{V_AM+i}')

    def publish(t, src, T, final=False):
        for i in range(4):
            a(f'v_cvt_pk_bf16_f32 v{T+i}, v{src+2*i}, v{src+2*i+1}')
        if final:
            a(f's_add_u32 s30, s29, {t}\ns_lshl_b32 s30, s30, 15\ns_lshl_b32 s31, s24, 7\ns_add_u32 s30, s30, s31')
            a(f'buffer_store_dwordx4 v[{T}:{T+3}], v{V_XROW}, s[16:19], s30 offen'); vm.issue('st')
            return
        a(f's_add_u32 s32, s29, {t}\ns_lshl_b32 s30, s32, 15')
        a(f's_lshl_b32 s31, s24, 12\ns_add_u32 s30, s30, s31\ns_add_u32 s30, s30, s34')
        a(f'buffer_store_dwordx4 v[{T}:{T+3}], v{V_F32}, s[4:7], s30 offen sc1'); vm.issue('st')
        S, Q = T+4, T+5
        a(f'v_add_f32 v{S}, v{src}, v{src+1}\nv_mul_f32 v{Q}, v{src}, v{src}')
        for i in range(1, 8):
            if i >= 2: a(f'v_add_f32 v{S}, v{S}, v{src+i}')
            a(f'v_fmac_f32 v{Q}, v{src+i}, v{src+i}')
        a(f's_lshl_b32 s30, s32, 11\ns_lshl_b32 s31, s24, 8')
        a(f'v_add_f32_dpp v{S}, v{S}, v{S} row_ror:8 row_mask:0xf bank_mask:0xf')
        a(f'v_add_f32_dpp v{Q}, v{Q}, v{Q} row_ror:8 row_mask:0xf bank_mask:0xf')
        a(f's_add_u32 s30, s30, s31\ns_add_u32 s30, s30, s34')
        a(f'v_permlane16_swap_b32 v{S}, v{Q}')
        a(f'v_add_f32 v{S}, v{S}, v{Q}')
        a(f'v_mov_b32 v{Q}, v{S}')
        a(f's_add_u32 s30, s30, {XS-XF}')
        a(f'v_permlane32_swap_b32 v{S}, v{Q}')
        a(f'v_add_f32 v{S}, v{S}, v{Q}')
        a('s_mov_b64 exec, 0xff00ff')
        a(f'buffer_store_dword v{S}, v{V_STS}, s[4:7], s30 offen sc1'); vm.issue('st')
        a('s_mov_b64 exec, -1')

    def signal(kind, sig_mask, sig_dword, next_layer=False):
        vm.wait('st')
        a('s_barrier')
        off = kind*512 + (16*4096 if next_layer else 0)
        l1 = a.label('S')
        a(f's_add_u32 s35, s27, {off}')
        a(f's_lshl_b32 s96, {sig_dword}, 2\ns_add_u32 s96, s96, s35')
        a(f's_cmp_lg_u32 s20, 0\ns_cbranch_scc1 {l1}')
        a(f's_mov_b64 exec, {hex(sig_mask)}')
        a(f'buffer_store_dword v{V_ONE}, v{V_L4}, s[4:7], s96 offen')
        a('s_mov_b64 exec, -1')
        a(f'{l1}:')
    def poll(sig_mask, poll_mask_expr):
        ldB = a.label('S'); ld = a.label('S'); lp = a.label('S'); ls = a.label('S')
        def one(o, tgt):
            a(f'buffer_load_dword v{V_T0}, v{V_L4}, s[4:7], s35 offen offset:{o} sc1')
            a('s_waitcnt vmcnt(0)')
            a(f'v_cmp_ne_u32 vcc, v{V_ONE}, v{V_T0}')
            a(f's_cbranch_vccz {tgt}')
        def storeB(skip):
            a(f's_cmp_lg_u32 s20, 3\ns_cbranch_scc1 {skip}')
            a(f's_mov_b64 exec, {hex(sig_mask)}')
            a(f'buffer_store_dword v{V_ONE}, v{V_L4}, s[4:7], s96 offen offset:256 sc1')
        a(f's_mov_b64 exec, {poll_mask_expr}')
        for _ in range(3): one(0, ldB)
        storeB(ls)
        a(f'{ls}:\ns_mov_b64 exec, {poll_mask_expr}')
        a(f'{lp}:')
        for o in (0, 0, 256): one(o, ld)
        a(f's_add_u32 s39, s39, 1\ns_cmp_lt_u32 s39, 50000\ns_cbranch_scc1 {lp}')
        a(f's_branch {ld}')
        a(f'{ldB}:')
        storeB(ld)
        a(f'{ld}:')
        a('s_mov_b64 exec, -1')
        vm.q = []

    vm.wait('x')
    for t in range(2):
        for i in range(4):
            a(f'v_lshlrev_b32 v{V_RES+8*t+2*i}, 16, v{56+4*t+i}')
            a(f'v_and_b32 v{V_RES+8*t+2*i+1}, 0xffff0000, v{56+4*t+i}')
    a(f's_add_u32 s34, s26, {XF}')
    publish(0, V_RES, 64); publish(1, V_RES+8, 72)
    for f in wq[3:6]: f()
    signal(0, 0x101, 's36')
    stamp('pub0')
    a(f'v_and_b32 v50, 31, v0\nv_lshlrev_b32 v50, 2, v50\nv_lshrrev_b32 v51, 5, v0')
    a(f'v_mul_u32_u24 v52, {8*6144}, v51\nv_add_u32 v52, v52, v50')
    a(f'v_mul_u32_u24 v53, {8*7168}, v51\nv_add_u32 v53, v53, v50')
    for f in wq[6:]: f()
    a(f's_lshl_b32 s30, s22, 7\ns_add_u32 s30, s30, {CSQ}')
    a(f's_mul_i32 s31, s22, 448\ns_add_u32 s31, s31, {CS1}')
    for p in range(8):
        for seg in range(3):
            a(f's_add_u32 s32, s30, {p*6144+seg*2048}')
            a(f'buffer_load_dword v{64+seg*8+p}, v52, s[4:7], s32 offen')
        a(f's_add_u32 s32, s31, {p*7168}')
        for tl in range(4):
            a(f'buffer_load_dword v{88+tl*8+p}, v53, s[4:7], s32 offen offset:{tl*128}')
    a('s_waitcnt vmcnt(0)'); vm.q = []
    stamp('wq_arrived')
    for tl in range(7):
        b = 64 + tl*8
        for p in range(1, 8): a(f'v_add_f32 v{b}, v{b}, v{b+p}')
        a(f'v_mov_b32 v{b+1}, v{b}\nv_permlane32_swap_b32 v{b}, v{b+1}\nv_add_f32 v{b}, v{b}, v{b+1}')
        if tl == 6: a(f'v_and_b32 v{b+1}, 16, v0\nv_cmp_eq_u32 vcc, 0, v{b+1}\nv_cndmask_b32 v{b}, 0, v{b}, vcc')
        a(f'v_cvt_pk_bf16_f32 v{b+1}, v{b}, v{b}')
        a(f'v_and_b32 v{b+2}, 0xffff0000, v{b+1}')
        a(f'v_sub_f32 v{b+2}, v{b}, v{b+2}')
        a(f'v_cvt_pk_bf16_f32 v{b+2}, v{b+2}, v{b+2}')
        a(f'v_accvgpr_write_b32 a{A_CQ+2*tl}, v{b+1}\nv_accvgpr_write_b32 a{A_CQ+2*tl+1}, v{b+2}')
    a(f'v_accvgpr_write_b32 a{A_CQ+14}, 0\nv_accvgpr_write_b32 a{A_CQ+15}, 0')
    a('s_barrier')
    a('M_layer:')
    a('s_lshl_b32 s30, s20, 3\ns_lshl_b32 s100, 0xff, s30\ns_mov_b32 s101, 0')
    poll(0x101, 's[100:101]')
    stamp('P1_start')

    ST = 240; MB_ = 248
    RA = 252; RA2 = 253
    def load_x(base_off):
        a(f's_lshl_b32 s30, s28, 11\ns_add_u32 s30, s30, s26\ns_add_u32 s30, s30, {base_off + 2*MB}')
        for i in range(4):
            a(f'buffer_load_dwordx2 v[{ST+2*i}:{ST+2*i+1}], v{V_STL}, s[4:7], s30 offen offset:{i*256} sc1'); vm.issue('stat')
        a(f's_lshl_b32 s37, s28, 15\ns_add_u32 s37, s37, s26\ns_add_u32 s37, s37, {base_off}')
    def xload(i):
        if i % 4 == 0:
            a(f's_xor_b32 s38, s24, {i//4}\ns_lshl_b32 s38, s38, 12\ns_add_u32 s38, s38, s37')
        a(f'buffer_load_dwordx4 {xreg(i)}, v{V_L16}, s[4:7], s38 offen offset:{(i%4)*1024} sc1'); vm.issue(('x', i))
    def stats_code():
        L = []
        for k in range(2):
            L += [f'v_add_f32 v{ST+k}, v{ST+k}, v{ST+2+k}', f'v_add_f32 v{ST+4+k}, v{ST+4+k}, v{ST+6+k}']
        for k in range(2): L += [f'v_add_f32 v{ST+k}, v{ST+k}, v{ST+4+k}']
        for k in range(2): L += [f'v_mov_b32 v{ST+2+k}, v{ST+k}']
        for k in range(2): L += [f'v_permlane32_swap_b32 v{ST+k}, v{ST+2+k}']
        for k in range(2): L += [f'v_add_f32 v{ST+k}, v{ST+k}, v{ST+2+k}']
        S, Q = ST, ST+1
        L += [f'v_mul_f32 v{S}, 0xbb000000, v{S}',
              f'v_mul_f32 v{Q}, 0x3b000000, v{Q}',
              f'v_fma_f32 v{Q}, -v{S}, v{S}, v{Q}',
              f'v_max_f32 v{Q}, 0, v{Q}',
              f'v_add_f32 v{Q}, {hex(f2u(1e-5))}, v{Q}',
              f'v_rsq_f32 v{RA}, v{Q}',
              f'v_cvt_pk_bf16_f32 v{ST+2}, v{S}, v{S}',
              f'v_and_b32 v{ST+3}, 0xffff0000, v{ST+2}',
              f'v_sub_f32 v{ST+3}, v{S}, v{ST+3}',
              f'v_cvt_pk_bf16_f32 v{ST+2}, v{S}, v{ST+3}',
              f'v_cmp_gt_u32 vcc, 32, v0',
              f'v_mov_b32 v{MB_+2}, 0', f'v_mov_b32 v{MB_+3}, 0',
              f'v_cndmask_b32 v{MB_}, 0, v{ST+2}, vcc',
              f'v_mov_b32 v{MB_+1}, v{MB_}']
        return L

    WB = 160; ACC = 184
    load_x(XF)
    NPRE = 8
    for i in range(NPRE): xload(i)
    CT = 232
    a(f'''
    v_lshrrev_b32 v{CT}, 1, v0
    v_mul_u32_u24 v{CT+1}, {SLOT}, v{CT}
    v_and_b32 v{CT+2}, 1, v0
    v_mul_u32_u24 v{CT+2}, 1056, v{CT+2}
    v_add_u32 v{CT+1}, v{CT+1}, v{CT+2}
    v_add_u32 v{CT+1}, {L_KV+3072}, v{CT+1}
    s_lshl_b32 s30, s21, 2
    v_add_u32 v{CT}, s30, v{CT}
    v_mov_b32 v{CT+2}, 0x3f803f80
    v_cmp_le_u32 vcc, 8, v{CT}
    v_cndmask_b32 v{CT+4}, 0, v{CT+2}, vcc
    v_mov_b32 v{CT+5}, v{CT+4}
    v_mov_b32 v{CT+6}, v{CT+4}
    v_mov_b32 v{CT+7}, v{CT+4}
    s_mov_b64 exec, 0xffffff
    ds_write_b128 v{CT+1}, v[{CT+4}:{CT+7}]
    s_mov_b64 exec, -1
    '''); lg.issue('ones')
    TADR = (V_T1, V_T2)
    def wread(i, segs, nst, width):
        if i % 4 == 0:
            a(f's_xor_b32 s33, s24, {i//4}\ns_mul_i32 s33, s33, 12288\nv_add_u32 v{TADR[(i//4)%2]}, s33, v{V_TR}')
        for n, seg in enumerate(segs):
            r = WB + (i % nst)*width + n*4
            off = seg*4096 + (i % 4)*1024
            a(f'ds_read_b64_tr_b16 v[{r}:{r+1}], v{TADR[(i//4)%2]} offset:{off}'); lg.issue(('w', i))
            a(f'ds_read_b64_tr_b16 v[{r+2}:{r+3}], v{TADR[(i//4)%2]} offset:{off+256}'); lg.issue(('w', i))
    wread(0, (1, 2), 3, 8); wread(1, (1, 2), 3, 8)
    sc = stats_code()
    AK, AV, AQ = ACC+16, ACC+32, ACC
    for i in range(32):
        vm.wait(('x', i)); lg.wait(('w', i))
        wb = WB + (i % 3)*8
        a(f'{MF} {v(AK,16)}, {v(wb,4)}, {xreg(i)}, {"0" if i == 0 else v(AK,16)}')
        if i + 2 < 32: wread(i+2, (1, 2), 3, 8)
        a(f'{MF} {v(AV,16)}, {xreg(i)}, {v(wb+4,4)}, {"0" if i == 0 else v(AV,16)}')
        if i + NPRE < 32: xload(i + NPRE)
        if i >= 2:
            for _ in range(3):
                if sc: a(sc.pop(0))
        if i == 14:
            a(f's_lshl_b32 s30, s20, 7\ns_add_u32 s30, s30, {T_AB}')
            a(f'v_and_b32 v{V_T3}, 124, v{V_L4}\nv_add_u32 v{V_T3}, s30, v{V_T3}')
            a(f'ds_write_b32 v{V_T3}, v{RA}'); lg.issue('tab')
            a(f'v_add_u32 v{V_T3}, s30, v{V_H16}')
            a(f'v_mul_f32 v{RA2}, {hex(f2u(0.25*LOG2E))}, v{RA}')
    assert not sc
    a(f'{MF} {v(AK,16)}, {a_(A_CQ+2,4)}, {v(MB_,4)}, {v(AK,16)}')
    a(f'{MF} {v(AV,16)}, {v(MB_,4)}, {a_(A_CQ+4,4)}, {v(AV,16)}')
    stamp('P1_kv')
    TA = AQ
    for i in range(4): wread(i, (0,), 6, 4)
    KVP = 232
    epi = []
    for q in range(2): epi.append(('ds', f'ds_read_b128 {v(ST+4*q,4)}, v{V_T3} offset:{q*32}', 'ta0'))
    for r in range(16): epi.append(f'v_mul_f32 v{AK+r}, v{RA}, v{AK+r}')
    for i in range(8): epi.append(f'v_cvt_pk_bf16_f32 v{KVP+i}, v{AK+2*i}, v{AK+2*i+1}')
    epi.append(f's_lshl_b32 s30, s22, 18\ns_lshl_b32 s31, s28, 12\ns_add_u32 s30, s30, s31\ns_add_u32 s30, s30, s26\ns_add_u32 s30, s30, {KVO}')
    for i in range(2): epi.append(('vm', f'buffer_store_dwordx4 {v(KVP+4*i,4)}, v{V_L16}, s[4:7], s30 offen offset:{i*1024} sc1', 'st'))
    epi.append(('wait', 'ta0'))
    for r in range(8): epi.append(f'v_mul_f32 v{AV+r}, v{ST+r}, v{AV+r}')
    for q in range(2): epi.append(('ds', f'ds_read_b128 {v(ST+4*q,4)}, v{V_T3} offset:{64+q*32}', 'ta1'))
    for i in range(4): epi.append(f'v_cvt_pk_bf16_f32 v{AK+i}, v{AV+2*i}, v{AV+2*i+1}')
    epi.append(('vm', f'buffer_store_dwordx4 {v(AK,4)}, v{V_L16}, s[4:7], s30 offen offset:2048 sc1', 'st'))
    epi.append(('wait', 'ta1'))
    for r in range(8): epi.append(f'v_mul_f32 v{AV+8+r}, v{ST+r}, v{AV+8+r}')
    for i in range(4): epi.append(f'v_cvt_pk_bf16_f32 v{AK+4+i}, v{AV+8+2*i}, v{AV+8+2*i+1}')
    epi.append(('vm', f'buffer_store_dwordx4 {v(AK+4,4)}, v{V_L16}, s[4:7], s30 offen offset:3072 sc1', 'st'))
    for src, o in ((KVP, 0), (KVP+4, 1024), (AK, 2048), (AK+4, 3104)):
        epi.append(('ds', f'ds_write_b128 v{V_KA}, {v(src,4)} offset:{8*SLOT+o}', 'kvw'))
    def emit(x):
        if isinstance(x, str): a(x)
        elif x[0] == 'ds': a(x[1]); lg.issue(x[2])
        elif x[0] == 'vm': a(x[1]); vm.issue(x[2])
        elif x[0] == 'wait': lg.wait(x[1])
        elif x[0] == 'vwait': vm.wait(x[1])
        elif x[0] == 'call': x[1]()
    for i in range(32):
        lg.wait(('w', i))
        a(f'{MF} {v(AQ,16)}, {v(WB+(i%6)*4,4)}, {xreg(i)}, {"0" if i == 0 else v(AQ,16)}')
        if i + 4 < 32: wread(i+4, (0,), 6, 4)
        if i >= 1:
            for _ in range(7):
                if epi: emit(epi.pop(0))
    assert not epi
    a(f'{MF} {v(AQ,16)}, {a_(A_CQ,4)}, {v(MB_,4)}, {v(AQ,16)}')
    vm.wait('st'); lg.wait_all()
    a('s_barrier')
    l1 = a.label('K'); l2 = a.label('K'); lp = a.label('K')
    a(f's_lshl_b32 s30, s25, 8\ns_lshl_b32 s31, s21, 4\ns_add_u32 s30, s30, s31\ns_add_u32 s30, s30, s22\ns_lshl_b32 s30, s30, 7\ns_add_u32 s35, s30, {FKV}')
    a(f's_cmp_lg_u32 s20, 0\ns_cbranch_scc1 {l1}')
    a(f's_mov_b64 exec, 1\nbuffer_store_dword v{V_ONE}, v{V_ZERO}, s[4:7], s35 offen sc1\ns_mov_b64 exec, -1')
    a(f'{l1}:')
    QP = 48
    for r in range(16): a(f'v_mul_f32 v{AQ+r}, v{RA2}, v{AQ+r}')
    for i in range(8): a(f'v_cvt_pk_bf16_f32 v{QP+i}, v{AQ+2*i}, v{AQ+2*i+1}')
    stamp('P1_epi')
    a('s_lshr_b32 s30, s20, 1\ns_sub_u32 s30, 2, s30\ns_min_u32 s30, s30, s21')
    a(f's_cmp_eq_u32 s30, 0\ns_cbranch_scc1 {l2}')
    a('s_lshl_b32 s30, s30, 11\ns_sub_u32 s35, s35, s30')
    a('s_mov_b64 exec, 1')
    a(f'{lp}:')
    a(f'buffer_load_dword v{V_T0}, v{V_ZERO}, s[4:7], s35 offen sc1')
    a('s_waitcnt vmcnt(0)')
    a(f'v_cmp_ne_u32 vcc, v{V_ONE}, v{V_T0}')
    a(f's_cbranch_vccz {l2}')
    a(f's_add_u32 s39, s39, 1\ns_cmp_lt_u32 s39, 200000\ns_cbranch_scc1 {lp}')
    a(f'{l2}:')
    a('s_mov_b64 exec, -1')
    stamp('kv_sync')
    lv = a.label('K'); ld = a.label('K')
    a(f's_lshl_b32 s30, s22, 18\ns_add_u32 s30, s30, s26\ns_add_u32 s30, s30, {KVO}')
    a('s_lshl_b32 s31, s21, 2\ns_lshl_b32 s32, s20, 1\ns_add_u32 s31, s31, s32')
    a(f's_mul_i32 s32, s20, {2*SLOT}\ns_add_u32 s32, s32, {L_KV}')
    a(f's_cmp_ge_u32 s31, 8\ns_cbranch_scc1 {lv}')
    a(f'v_mov_b32 v{V_T2}, 0x7ff00000')
    order = [(sl, i) for i in (0, 1, 2, 3) for sl in range(2)]
    OFS = (0, 1024, 2048, 3104)
    for sl, i in order:
        a(f's_add_u32 s33, s32, {sl*SLOT+OFS[i]}\ns_mov_b32 m0, s33')
        if i < 2:
            a(f's_add_u32 s33, s30, {i*1024}')
            a(f'buffer_load_dwordx4 v{V_KDUP}, s[4:7], s33 offen sc1 lds')
        else:
            a(f'buffer_load_dwordx4 v{V_T2}, s[4:7], 0 offen sc1 lds')
    a(f's_branch {ld}')
    a(f'{lv}:')
    a('s_sub_u32 s31, s31, 8\ns_lshl_b32 s31, s31, 12\ns_add_u32 s30, s30, s31')
    for sl, i in order:
        a(f's_add_u32 s33, s32, {sl*SLOT+OFS[i]}\ns_mov_b32 m0, s33')
        a(f's_add_u32 s33, s30, {sl*4096+i*1024}')
        a(f'buffer_load_dwordx4 v{V_L16}, s[4:7], s33 offen sc1 lds')
    a(f'{ld}:')
    a('s_waitcnt vmcnt(0)\ns_barrier'); vm.q = []
    stamp('kv_dma')
    WO_ = 192
    def wo_items():
        it = []
        for i in range(16):
            def f(i=i):
                if i == 0: a(f's_lshl_b32 s100, s24, 16\ns_lshl_b32 s101, s20, 14\ns_add_u32 s100, s100, s101\ns_add_u32 s100, s100, {WOC}')
                elif i % 4 == 0: a('s_add_u32 s100, s100, 4096')
                a(f'buffer_load_dwordx4 {v(WO_+4*i,4)}, v{V_L16}, s[4:7], s100 offen offset:{(i%4)*1024}'); vm.issue('pf')
            it.append(f)
        return it
    def w1_items(lo, hi):
        n = (hi - lo) // 4; it = []
        for i in range(n):
            def f(i=i):
                if i == 0:
                    a(f's_mul_i32 s100, s20, {n*1024}\ns_add_u32 s100, s100, {lo*1024}')
                    a(f's_mul_i32 s101, s22, {112*1024}\ns_add_u32 s101, s101, s100\ns_add_u32 s101, s101, {W1C}')
                elif i % 4 == 0: a('s_add_u32 s100, s100, 4096\ns_add_u32 s101, s101, 4096')
                if i % 4 == 0: a('s_mov_b32 m0, s100')
                a(f'buffer_load_dwordx4 v{V_L16}, s[4:7], s101 offen offset:{(i%4)*1024} lds'); vm.issue('pf')
            it.append(f)
        return it
    def w2_items():
        it = []
        for gi in range(7):
            for hh in range(2):
                def f(gi=gi, hh=hh):
                    l = a.label('W')
                    a(f's_cmp_lg_u32 s25, 0\ns_cbranch_scc1 {l}')
                    a(f's_add_u32 s100, s24, {gi}\ns_sub_u32 s101, s100, 7\ns_cmp_ge_u32 s100, 7\ns_cselect_b32 s100, s101, s100\ns_sub_u32 s101, s100, 7\ns_cmp_ge_u32 s100, 7\ns_cselect_b32 s100, s101, s100')
                    a(f's_lshl_b32 s100, s100, 13\ns_mul_i32 s101, s24, {112*2048}\ns_add_u32 s100, s100, s101\ns_mul_i32 s101, s20, {28*2048}\ns_add_u32 s100, s100, s101\ns_add_u32 s100, s100, {W2C + hh*4096}')
                    for u in range(4):
                        r = gi*32 + hh*16 + u*4
                        a(f'buffer_load_dwordx4 {a_(r,4)}, v{V_L16}, s[4:7], s100 offen offset:{u*1024}')
                    a(f'{l}:')
                it.append(f)
        return it
    pf = w1_items(0, 88) + wo_items()
    KF = 56; NKF = 6; SBUF = (80, 96); SM = 112; NEG = 128; PB = 144; VF = 160; OA = 176
    MX = V_T0
    def pfi():
        if pf: pf.pop(0)()
    for hd in range(2):
        q = v(QP+4*hd, 4); VA = (V_VA0, V_VA1)[hd]
        kcnt = [0]
        def kread(blk):
            slot = kcnt[0] % NKF; kcnt[0] += 1
            a(f'ds_read_b128 {v(KF+4*slot,4)}, v{V_KA} offset:{blk*SLOT+hd*1024}'); lg.issue(('k', blk))
            return v(KF+4*slot, 4)
        order = [0, 8, 1, 2, 3, 4, 5, 6, 7]
        bufs = {0: SBUF[0], 8: SM, 1: SBUF[1], 2: NEG, 3: PB, 4: SBUF[0], 5: SBUF[1], 6: NEG, 7: PB}
        kr = {}
        for b in order[:5]: kr[b] = kread(b)
        def qk(b, dst, c='0'):
            lg.wait(('k', b)); a(f'{MF} {v(dst,16)}, {kr[b]}, {q}, {c}')
        qk(0, bufs[0]); qk(8, bufs[8]); qk(1, bufs[1])
        kr[4] = kread(4)
        pfi()
        qk(2, bufs[2])
        for r in range(16):
            a(f'v_cndmask_b32 v{SM+r}, v{SBUF[0]+r}, v{SM+r}, s[{S_M+2*r}:{S_M+2*r+1}]')
            if r == 7: qk(3, bufs[3]); kr[5] = kread(5); kr[6] = kread(6)
        a(f'v_max_f32 v{MX}, v{SM}, v{SM+1}')
        qk(4, bufs[4]); kr[7] = kread(7)
        for i in range(1, 8): a(f'v_max3_f32 v{MX}, v{SM+2*i}, v{SM+2*i+1}, v{MX}')
        k2 = {}
        for blk in range(1, 8):
            b = bufs[blk]
            for i in range(8): a(f'v_max3_f32 v{MX}, v{b+2*i}, v{b+2*i+1}, v{MX}')
            if blk + 4 <= 7: qk(blk+4, bufs[blk+4])
            if blk in (4, 5, 6): k2[blk-3] = kread(blk-3)
            if blk in (2, 5): pfi()
        kr = k2
        a(f'v_mov_b32 v{NEG}, v{MX}\nv_permlane32_swap_b32 v{NEG}, v{MX}\nv_max_f32 v{MX}, v{NEG}, v{MX}')
        for r in range(16): a(f'v_sub_f32 v{NEG+r}, 0, v{MX}')
        def vread(blk, hf, r):
            a(f'ds_read_b128 {v(r,4)}, v{VA} offset:{blk*SLOT+hf*1056}'); lg.issue(('v', blk))
        vread(0, 0, VF); vread(0, 1, VF+4); vread(8, 0, VF+8); vread(8, 1, VF+12)
        qk(1, SBUF[1], v(NEG,16))
        for r in range(16): a(f'v_sub_f32 v{SM+r}, v{SM+r}, v{MX}')
        for r in range(16):
            a(f'v_exp_f32 v{SM+r}, v{SM+r}')
            if r % 2 == 0 and r >= 2: a(f'v_cvt_pk_bf16_f32 v{SM+(r-2)//2}, v{SM+r-2}, v{SM+r-1}')
            if r == 8: pfi()
        a(f'v_cvt_pk_bf16_f32 v{SM+7}, v{SM+14}, v{SM+15}')
        for i in range(8):
            a(f'v_and_b32 v{SM+8+i}, v{V_AM+i}, v{SM+i}')
            a(f'v_xor_b32 v{SM+i}, v{SM+8+i}, v{SM+i}')
        pend = [(v(VF,4), v(SM,4), ('v',0)), (v(VF+4,4), v(SM+4,4), None), (v(VF+8,4), v(SM+8,4), ('v',8)), (v(VF+12,4), v(SM+12,4), None)]
        first = [True]
        def pv():
            A, B, tg = pend.pop(0)
            if tg: lg.wait(tg)
            a(f'{MF} {v(OA,16)}, {A}, {B}, {"0" if first[0] else v(OA,16)}'); first[0] = False
        for blk in range(1, 8):
            b = SBUF[blk % 2]; p = PB + 8*(blk % 2); vf = VF + 8*((blk+1) % 2)
            npv = len(pend)
            if blk + 1 < 8: qk(blk+1, SBUF[(blk+1) % 2], v(NEG,16))
            slots = {3: 1, 7: 1, 11: 2, 14: 3} if npv == 4 else {4: 1, 9: 1}
            for r in range(16):
                a(f'v_exp_f32 v{b+r}, v{b+r}')
                if r % 2 == 0 and r >= 2: a(f'v_cvt_pk_bf16_f32 v{p+(r-2)//2}, v{b+r-2}, v{b+r-1}')
                if r in slots: pv()
                if npv == 4:
                    if r == 8: vread(blk, 0, vf); vread(blk, 1, vf+4)
                else:
                    if r == 1: vread(blk, 0, vf); vread(blk, 1, vf+4)
                if r == 12 and blk + 3 < 8: kr[blk+3] = kread(blk+3)
                if r in (6, 13): pfi()
            a(f'v_cvt_pk_bf16_f32 v{p+7}, v{b+14}, v{b+15}')
            pend += [(v(vf,4), v(p,4), ('v', blk)), (v(vf+4,4), v(p+4,4), None)]
        pv(); pv()
        a(f's_lshl_b32 s30, s28, 15\ns_lshl_b32 s31, s22, 11\ns_add_u32 s30, s30, s31\ns_add_u32 s30, s30, s26\ns_add_u32 s30, s30, {OF}')
        pfi()
        a(f'v_rcp_f32 v{MX}, v{OA+8}')
        for r in range(8): a(f'v_mul_f32 v{OA+r}, v{OA+r}, v{MX}')
        for i in range(4): a(f'v_cvt_pk_bf16_f32 v{OA+8+i}, v{OA+2*i}, v{OA+2*i+1}')
        a(f'buffer_store_dwordx4 {v(OA+8,4)}, v{V_L16}, s[4:7], s30 offen offset:{hd*1024} sc1'); vm.issue('st')
    while pf: pfi()
    stamp('P2_done')
    vm.q.append('st')
    signal(1, 1, 's22')
    a('s_lshl_b32 s30, s20, 2\ns_lshl_b32 s100, 0xf, s30\ns_mov_b32 s101, 0')
    poll(1, 's[100:101]')
    stamp('sync_o')
    OB = 48; AC = 112
    a(f's_lshl_b32 s30, s29, 15\ns_lshl_b32 s31, s20, 13\ns_add_u32 s30, s30, s31\ns_add_u32 s30, s30, s26\ns_add_u32 s30, s30, {OF}')
    for t in range(2):
        for k in range(8):
            if k % 4 == 0: a(f's_add_u32 s31, s30, {t*32768 + k*1024}')
            a(f'buffer_load_dwordx4 {v(OB+(t*8+k)*4,4)}, v{V_L16}, s[4:7], s31 offen offset:{(k%4)*1024} sc1'); vm.issue(('o', t, k))
    def red_write_items(t, adr):
        return [('ds', f'ds_write_b128 v{adr}, {v(AC+(t*2+ft)*16+4*q,4)} offset:{ft*128+q*32}', 'rw') for ft in range(2) for q in range(4)]
    def red_read(buf, D, adr):
        a(f'v_add_u32 v{adr}, {buf}, v{V_RR}')
        for src in range(4):
            a(f'ds_read_b128 {v(D+src*8,4)}, v{adr} offset:{src*RW}'); lg.issue(('rr', D, src))
            a(f'ds_read_b128 {v(D+src*8+4,4)}, v{adr} offset:{src*RW+16}'); lg.issue(('rr', D, src))
    def red_add(t, D):
        for src in range(4):
            lg.wait(('rr', D, src))
            for i in range(8): a(f'v_add_f32 v{V_RES+8*t+i}, v{V_RES+8*t+i}, v{D+src*8+i}')
    a(f'v_add_u32 v{V_T1}, {L_S0}, v{V_RW}\nv_add_u32 v{V_T2}, {L_S1}, v{V_RW}')
    rw0 = []
    for t in range(2):
        for k in range(8):
            vm.wait(('o', t, k))
            for ft in range(2):
                acc = v(AC+(t*2+ft)*16, 16)
                a(f'{MF} {acc}, {v(WO_+(k*2+ft)*4,4)}, {v(OB+(t*8+k)*4,4)}, {"0" if k == 0 else acc}')
                if t == 1 and k >= 2 and rw0: emit(rw0.pop(0))
        if t == 0: rw0 = red_write_items(0, V_T1)
    for x in rw0 + red_write_items(1, V_T2): emit(x)
    lg.wait_all(); a('s_barrier')
    stamp('P3_mfma')
    a(f's_add_u32 s34, s26, {X2F}')
    red_read(L_S0, 48, V_T1); red_read(L_S1, 80, V_T2)
    for t in range(2):
        red_add(t, (48, 80)[t])
        publish(t, V_RES+8*t, 112+8*t)
    stamp('P3_pub')
    signal(2, 0x101, 's36')
    for f in w1_items(88, 112): f()
    a('s_lshl_b32 s30, s20, 3\ns_lshl_b32 s100, 0xff, s30\ns_mov_b32 s101, 0')
    poll(0x101, 's[100:101]')
    stamp('sync_x2')
    WB4 = 160; AC4 = 184
    load_x(X2F)
    for i in range(NPRE): xload(i)
    a('s_barrier')
    def w1read(i, tiles, nst, width, base):
        if i % 4 == 0:
            a(f's_xor_b32 s33, s24, {i//4}\ns_mul_i32 s33, s33, 14336\nv_add_u32 v{TADR[(i//4)%2]}, s33, v{V_W1A}')
        for n, tl in enumerate(tiles):
            a(f'ds_read_b128 {v(base+(i%nst)*width+n*4,4)}, v{TADR[(i//4)%2]} offset:{(i%4)*3584+tl*1024}'); lg.issue(('w', i, tl))
    w1read(0, (0,1,2), 2, 12, WB4)
    sc = stats_code() + [f'v_mul_f32 v{RA2}, {hex(f2u(-LOG2E))}, v{RA}']
    w2 = w2_items()
    for i in range(32):
        vm.wait(('x', i))
        for tl in range(3):
            lg.wait(('w', i, tl))
            acc = v(AC4+16*tl, 16)
            a(f'{MF} {acc}, {v(WB4+(i%2)*12+tl*4,4)}, {xreg(i)}, {"0" if i == 0 else acc}')
            if tl == 0 and i + 1 < 32: w1read(i+1, (0,1,2), 2, 12, WB4)
            if tl == 1 and i + NPRE < 32: xload(i + NPRE)
            if tl == 2 and i >= 2:
                for _ in range(3):
                    if sc: a(sc.pop(0))
    assert not sc
    for tl in range(3):
        a(f'{MF} {v(AC4+16*tl,16)}, {a_(A_C1+2*tl,4)}, {v(MB_,4)}, {v(AC4+16*tl,16)}')
    stamp('P4_A')
    A3 = 232
    for i in range(3): w1read(i, (3,), 4, 4, WB4)
    a(f's_mul_i32 s30, s28, {112*1024}\ns_mul_i32 s31, s22, 7168\ns_add_u32 s30, s30, s31\ns_add_u32 s30, s30, s26\ns_add_u32 s30, s30, {HF}\ns_add_u32 s31, s30, 4096')
    E = 176
    def silu_items(accb, n, kb):
        L = []
        for r in range(8): L.append(f'v_mul_f32 v{E+r}, v{RA2}, v{accb+r}')
        for r in range(8):
            L.append(f'v_exp_f32 v{E+r}, v{E+r}')
            L.append(f'v_mul_f32 v{accb+r}, v{RA}, v{accb+r}')
        for r in range(8): L.append(f'v_add_f32 v{E+r}, 1.0, v{E+r}')
        for r in range(8): L.append(f'v_rcp_f32 v{E+r}, v{E+r}')
        for r in range(8): L.append(f'v_mul_f32 v{accb+r}, v{accb+r}, v{E+r}')
        for i in range(4): L.append(f'v_cvt_pk_bf16_f32 v{accb+i}, v{accb+2*i}, v{accb+2*i+1}')
        L.append(('vm', f'buffer_store_dwordx4 {v(accb,4)}, v{V_L16}, s[4:7], {"s30" if kb < 4 else "s31"} offen offset:{(kb%4)*1024} sc1', 'st'))
        return L
    epi = []
    for kb in range(6):
        epi += silu_items(AC4+8*kb, 8, kb)
    per = -(-len(epi) // 31)
    for i in range(32):
        lg.wait(('w', i, 3))
        a(f'{MF} {v(A3,16)}, {v(WB4+(i%4)*4,4)}, {xreg(i)}, {"0" if i == 0 else v(A3,16)}')
        if i + 3 < 32: w1read(i+3, (3,), 4, 4, WB4)
        if i >= 1:
            for _ in range(per if i < 31 else 0):
                if len(epi) > 20: emit(epi.pop(0))
        if i % 2 == 0 and w2: w2.pop(0)()
    a(f'{MF} {v(A3,16)}, {a_(A_C1+6,4)}, {v(MB_,4)}, {v(A3,16)}')
    for x in epi: emit(x)
    for x in silu_items(A3, 8, 6): emit(x)
    assert not w2
    stamp('P4_epi')
    vm.q.append('st')
    signal(3, 1, 's22')
    a('s_lshl_b32 s30, s20, 2\ns_lshl_b32 s100, 0xf, s30\ns_mov_b32 s101, 0')
    poll(1, 's[100:101]')
    stamp('sync_h')
    HB = 48; NH = 12
    a(f's_mul_i32 s37, s29, {112*1024}\ns_mul_i32 s31, s20, {28*1024}\ns_add_u32 s37, s37, s31\ns_add_u32 s37, s37, s26\ns_add_u32 s37, s37, {HF}')
    def hload(n):
        t, k = divmod(n, 28)
        if k % 4 == 0:
            gi = k // 4
            a(f's_add_u32 s38, s24, {gi}\ns_sub_u32 s33, s38, 7\ns_cmp_ge_u32 s38, 7\ns_cselect_b32 s38, s33, s38\ns_sub_u32 s33, s38, 7\ns_cmp_ge_u32 s38, 7\ns_cselect_b32 s38, s33, s38')
            a(f's_lshl_b32 s38, s38, 12\ns_add_u32 s38, s38, s37')
            if t: a(f's_add_u32 s38, s38, {112*1024}')
        a(f'buffer_load_dwordx4 {v(HB+4*(n%NH),4)}, v{V_L16}, s[4:7], s38 offen offset:{(k%4)*1024} sc1'); vm.issue(('h', n))
    for n in range(NH): hload(n)
    a(f'v_add_u32 v{V_T1}, {L_S1}, v{V_RW}')
    a(f's_add_u32 s34, s26, {LSTR+XF}')
    def fin(t):
        lf = a.label('F'); le = a.label('F')
        red_add(t, 176)
        a(f's_cmp_lg_u32 s25, 0\ns_cbranch_scc1 {lf}')
        q0 = list(vm.q)
        publish(t, V_RES+8*t, 208)
        a(f's_branch {le}\n{lf}:')
        publish(t, V_RES+8*t, 208, final=True)
        a(f'buffer_load_dword v{V_T0}, v{V_ZERO}, s[4:7], 0 offen')
        a(f'{le}:')
        vm.q = q0 + ['st', 'st']
    rw0 = []
    for n in range(56):
        t, k = divmod(n, 28)
        vm.wait(('h', n))
        for ft in range(2):
            acc = v(AC+(t*2+ft)*16, 16)
            a(f'{MF} {acc}, {a_((k*2+ft)*4,4)}, {v(HB+4*(n%NH),4)}, {"0" if k == 0 else acc}')
            if n >= 29 and rw0: emit(rw0.pop(0))
        if n + NH < 56: hload(n + NH)
        if n == 27: rw0 = red_write_items(0, V_T1)
        if n == 35: lg.wait_all(); a('s_barrier'); red_read(L_S1, 176, V_T2)
        if n == 38: fin(0)
        if n == 46: a('s_barrier')
    stamp('P5_kloop')
    for x in red_write_items(1, V_T1): emit(x)
    lg.wait_all(); a('s_barrier')
    red_read(L_S1, 176, V_T2)
    fin(1)
    stamp('P5_pub')
    dump_stamps()
    a('s_cmp_lg_u32 s25, 0\ns_cbranch_scc1 M_done')
    signal(0, 0x101, 's36', next_layer=True)
    for f in wq_items(): f()
    a('s_waitcnt vmcnt(0)\ns_barrier'); vm.q = []
    a(f's_mov_b32 s25, 1\ns_add_u32 s26, s26, {LSTR}\ns_add_u32 s27, s27, {16*4096}')
    a('s_branch M_layer')
    a('M_done:\ns_waitcnt vmcnt(0)')
    a('M_end:')

if __name__ == '__main__':
    a = Asm()
    a.launch('prep_kernel', 352, 256, lds=16384)
    a.launch('main_kernel', 256, 256, lds=163840)
    gen_prep(a)
    diag = len(sys.argv) > 2
    gen_main(a, diag=diag)
    if diag: open(sys.argv[2], 'w').write(' '.join(STAMPS))
    out = sys.argv[1] if len(sys.argv) > 1 else 'interleave_layers__sliding_block__dense_activation_silu__prompt.s'
    a.write(out)
```

```python
import sys, struct, os
from asmfw import *
KB = 1024; MB = 1 << 20
FG = 0; FKV = 96*KB; FID = 160*KB; FZERO = 192*KB
WOC = 1*MB; W2C = WOC + 512*KB; W1C = W2C + 1792*KB; CS1 = W1C + 1792*KB; CSQ = CS1 + 128*KB; WQC = 6*MB
LB0 = 8*MB; LSTR = 4*MB
XF = 16*MB; XS = XF + 2*MB; OF = 19*MB; HF = 21*MB
DUMP = 200*MB
L_KV = 96*KB; SLOT = 4160; OFS = (0, 1024, 2048, 3104)
L_S0 = 88*KB; L_S1 = 122*KB; RSTR = 272; RW = 32*RSTR
L_TAB = 156*KB
T_AB = L_TAB; T_CF = L_TAB + 512
LOG2E = 1.4426950408889634
def f2u(x): return struct.unpack('<I', struct.pack('<f', x))[0]
MF = 'v_mfma_f32_32x32x16_bf16'

class Ctrs:
    def __init__(self, a): self.a = a; self.vm = []; self.lg = []
    def _n(self, q, tag):
        if tag is None or tag not in q: return None
        return len(q) - 1 - q[::-1].index(tag)
    def wait(self, vm=None, lg=None):
        parts = []
        i = self._n(self.vm, vm)
        if i is not None:
            parts.append(f'vmcnt({min(len(self.vm)-1-i, 63)})'); self.vm = self.vm[i+1:]
        i = self._n(self.lg, lg)
        if i is not None:
            parts.append(f'lgkmcnt({min(len(self.lg)-1-i, 15)})'); self.lg = self.lg[i+1:]
        if parts: self.a('s_waitcnt ' + ' '.join(parts))
    def vm0(self): self.a('s_waitcnt vmcnt(0)'); self.vm = []
    def lg0(self): self.a('s_waitcnt lgkmcnt(0)'); self.lg = []

def srd(a, d, base, size):
    a(f's_mov_b32 s{d}, s{base}\ns_mov_b32 s{d+1}, s{base+1}\ns_mov_b32 s{d+2}, {hex(size)}\ns_mov_b32 s{d+3}, 0x00020000')

V_L16=1; V_T4=2; V_T5=3; V_XROW=4; V_F32=5; V_W1A=6; V_STS=7; V_STL=8; V_ZERO=9; V_L4=10; V_E=11
V_RW=12; V_RR=13; V_H16=14; V_T3=15
V_RES=16; V_AM=32
V_KA=40; V_VA0=41; V_VA1=42; V_KDUP=43; V_TS=44; V_T0=45; V_T1=46; V_T2=47
S_R12=40; S_R11=48; S_P=56; S_M=64
A_CQ=224; A_C1=230; A_X=240
SX, SJ = 's0', 's38'
STAMPS = []
def xreg(i): return v(48+4*i, 4) if i < 28 else a_(A_X+4*(i-28), 4)
def pk(op, d, s0, s1): return f'v_pk_{op}_f32 v[{d}:{d+1}], v[{s0}:{s0+1}], v[{s1}:{s1+1}]'

IDS = '''
        s_and_b32 s30, s2, 7
        s_lshr_b32 s31, s2, 3
        s_and_b32 s22, s31, 15          ; j
        s_lshr_b32 s31, s31, 4
        s_lshl_b32 s21, s30, 1
        s_add_u32 s21, s21, s31         ; g
        s_lshr_b32 s23, s22, 3          ; half
        s_and_b32 s24, s22, 7           ; c
        s_lshl_b32 s28, s21, 2
        s_lshl_b32 s29, s23, 1
        s_add_u32 s29, s29, s28         ; tbh
        s_add_u32 s28, s28, s20         ; tbw
        s_mov_b32 s63, 32768
'''
PUBADDR = f'''
        v_and_b32 v50, 7, v0             ; tok8
        v_lshrrev_b32 v51, 3, v0         ; fg
        s_lshl_b32 s30, s20, 3
        v_add_u32 v52, s30, v50
        v_lshlrev_b32 v{V_XROW}, 10, v52
        v_lshl_add_u32 v{V_XROW}, v51, 4, v{V_XROW}
        s_lshl_b32 s30, s29, 15
        s_lshl_b32 s31, s24, 7
        s_add_u32 s30, s30, s31
        v_add_u32 v{V_XROW}, s30, v{V_XROW}
        v_lshrrev_b32 v53, 1, v51
        v_lshlrev_b32 v{V_F32}, 10, v53
        v_and_b32 v53, 1, v51
        v_lshl_add_u32 v53, v53, 5, v52
        v_lshl_add_u32 v{V_F32}, v53, 4, v{V_F32}
        s_lshl_b32 s30, s29, 15
        s_lshl_b32 s31, s24, 12
        s_add_u32 s30, s30, s31
        s_add_u32 s30, s30, {XF}
        v_add_u32 v{V_F32}, s30, v{V_F32}
        v_bfe_u32 v53, v0, 4, 1
        v_lshlrev_b32 v53, 2, v53
        v_lshl_add_u32 v{V_STS}, v52, 3, v53
        s_lshl_b32 s30, s29, 11
        s_lshl_b32 s31, s24, 8
        s_add_u32 s30, s30, s31
        s_add_u32 s30, s30, {XS}
        v_add_u32 v{V_STS}, s30, v{V_STS}
'''

class G:
    def __init__(self, a, diag, opts):
        self.a = a; self.diag = diag; self.o = opts; self.c = Ctrs(a)
    def stamp(self, name):
        if not self.diag: return
        if name not in STAMPS: STAMPS.append(name)
        i = STAMPS.index(name); assert i < 30
        self.a(f's_memtime s[98:99]\ns_waitcnt lgkmcnt(0)\nv_writelane_b32 v{V_TS}, s98, {i}')
        self.c.lg = []
    def rstamp(self, i):
        if self.diag: self.a(f's_memrealtime s[98:99]\ns_waitcnt lgkmcnt(0)\nv_writelane_b32 v{V_TS}, s98, {i}')
    def dump_stamps(self):
        if not self.diag: return
        a = self.a; self.rstamp(31)
        a(f's_lshl_b32 s30, s2, 2\ns_add_u32 s30, s30, s20\ns_lshl_b32 s30, s30, 1\ns_add_u32 s30, s30, s25\ns_lshl_b32 s30, s30, 7\ns_add_u32 s30, s30, {DUMP}')
        a(f's_mov_b64 exec, 0xffffffff\nbuffer_store_dword v{V_TS}, v{V_L4}, s[4:7], s30 offen\ns_mov_b64 exec, -1')
        self.c.vm.append('dump')
    def emit(self, x):
        a, c = self.a, self.c
        if isinstance(x, str): a(x)
        elif callable(x): x()
        elif x[0] == 'ds': a(x[1]); c.lg.append(x[2])
        elif x[0] == 'vm': a(x[1]); c.vm.append(x[2])
        elif x[0] == 'lw': c.wait(lg=x[1])
        elif x[0] == 'vw': c.wait(vm=x[1])
    def take(self, L, n):
        for _ in range(n):
            if L: self.emit(L.pop(0))
    def layer0(self, fn):
        l = self.a.label('Z'); q = (list(self.c.vm), list(self.c.lg))
        self.a(f's_cmp_lg_u32 s25, 0\ns_cbranch_scc1 {l}')
        fn()
        self.a(f'{l}:')
        self.c.vm, self.c.lg = q
    def publish(self, t, src, T, dflag, usepk=True, cvt=True):
        L = []
        if cvt:
            for i in range(4): L.append(f'v_cvt_pk_bf16_f32 v{T+i}, v{src+2*i}, v{src+2*i+1}')
        L.append(('vm', f'buffer_store_dwordx4 v[{T}:{T+3}], v{V_F32}, s[4:7], {"s63" if t else "0"} offen {dflag}', 'st'))
        S, Q = T+4, T+6
        if usepk:
            L.append(pk('add', S, src, src+2)); L.append(pk('mul', Q, src, src))
            for i in (2, 4, 6):
                if i > 2: L.append(pk('add', S, S, src+i))
                L.append(f'v_pk_fma_f32 v[{Q}:{Q+1}], v[{src+i}:{src+i+1}], v[{src+i}:{src+i+1}], v[{Q}:{Q+1}]')
            L.append(f'v_add_f32 v{S}, v{S}, v{S+1}'); L.append(f'v_add_f32 v{Q}, v{Q}, v{Q+1}')
        else:
            L.append(f'v_add_f32 v{S}, v{src}, v{src+1}'); L.append(f'v_mul_f32 v{Q}, v{src}, v{src}')
            for i in range(1, 8):
                if i > 1: L.append(f'v_add_f32 v{S}, v{S}, v{src+i}')
                L.append(f'v_fmac_f32 v{Q}, v{src+i}, v{src+i}')
        L += [f'v_permlane16_swap_b32 v{S}, v{Q}', f'v_add_f32 v{S}, v{S}, v{Q}',
              f'v_add_f32_dpp v{S}, v{S}, v{S} row_ror:8 row_mask:0xf bank_mask:0xf', f'v_mov_b32 v{Q}, v{S}',
              f'v_permlane32_swap_b32 v{S}, v{Q}', f'v_add_f32 v{S}, v{S}, v{Q}']
        L.append(('vm', f's_mov_b64 exec, 0xff00ff\nbuffer_store_dword v{S}, v{V_STS}, s[4:7], 0 offen offset:{t*2048} {dflag}\ns_mov_b64 exec, -1', 'st'))
        return L
    def wsignal(self, sreg, off, fflag):
        self.a(f's_mov_b64 exec, 1\nbuffer_store_dword v{V_E}, v{V_ZERO}, s[4:7], {sreg} offen offset:{off} {fflag}\ns_mov_b64 exec, -1'); self.c.vm.append('fl')
    def poll(self, sreg, off, mask, hook=None):
        a = self.a; ld = a.label('S'); lp = a.label('S')
        def one():
            a(f'buffer_load_dword v{V_T0}, v{V_L4}, s[4:7], {sreg} offen offset:{off} sc1')
            a('s_waitcnt vmcnt(0)')
            a(f'v_cmp_ne_u32 vcc, v{V_E}, v{V_T0}')
        a(f's_mov_b64 exec, {mask}')
        if hook:
            one(); hook()
            a(f's_cbranch_vccz {ld}')
            a(f's_mov_b64 exec, {mask}')
        a(f'{lp}:')
        one()
        a(f's_cbranch_vccz {ld}')
        a(f's_add_u32 s39, s39, 1\ns_cmp_lt_u32 s39, 200000\ns_cbranch_scc1 {lp}')
        a(f'{ld}:')
        a('s_mov_b64 exec, -1')
        self.c.vm = []
    def img_items(self, src, tile, lo, hi, rot=False):
        a, c = self.a, self.c
        n = (hi - lo) // 4; it = []
        for i in range(n):
            def f(i=i):
                if i == 0:
                    a(f's_mul_i32 s100, s20, {n*1024}\ns_add_u32 m0, s100, {lo*1024}')
                    a(f's_mul_i32 s101, s22, {tile}\ns_add_u32 s101, s101, s100\ns_add_u32 s101, s101, {src+lo*1024}')
                elif i % 4 == 0: a('s_add_u32 m0, m0, 4096\ns_add_u32 s101, s101, 4096')
                a(f'buffer_load_dwordx4 v{V_L16}, s[4:7], s101 offen offset:{(i%4)*1024} lds'); c.vm.append('pf')
            it.append(f)
        return it

    def prep(self):
        a = self.a
        a.kernel('prep_kernel', vgpr=128, sgpr=100)
        a('''
        s_load_dwordx2 s[96:97], s[0:1], 64
        s_load_dwordx4 s[64:67], s[0:1], 0
        s_load_dwordx2 s[68:69], s[0:1], 16
        s_load_dwordx4 s[72:75], s[0:1], 32
        s_cmp_ge_u32 s2, 608
        s_cbranch_scc1 P_end
        v_lshrrev_b32 v1, 6, v0
        v_readfirstlane_b32 s20, v1
        v_mov_b32 v48, v0
        v_and_b32 v0, 63, v0
        s_cmp_ge_u32 s2, 256
        s_cbranch_scc1 P_w
        ''')
        a(IDS); a(PUBADDR)
        a('s_waitcnt lgkmcnt(0)')
        srd(a, 8, 64, 2*MB); srd(a, 4, 96, 0x10000000)
        a(f'''
        buffer_load_dwordx4 v[56:59], v{V_XROW}, s[8:11], 0 offen
        buffer_load_dwordx4 v[64:67], v{V_XROW}, s[8:11], s63 offen
        v_mov_b32 v72, 0
        v_lshlrev_b32 v48, 2, v48
        s_mul_i32 s30, s2, 768
        s_waitcnt vmcnt(0)
        ''')
        for t in range(2):
            for i in range(4):
                a(f'v_lshlrev_b32 v{V_RES+8*t+2*i}, 16, v{56+8*t+i}')
                a(f'v_and_b32 v{V_RES+8*t+2*i+1}, 0xffff0000, v{56+8*t+i}')
        for x in self.publish(0, V_RES, 56, '', cvt=False) + self.publish(1, V_RES+8, 64, '', cvt=False): self.emit(x)
        a('s_cmp_eq_u32 s20, 3\ns_cbranch_scc1 P_done\nbuffer_store_dword v72, v48, s[4:7], s30 offen')
        a('s_branch P_done')
        a('P_w:')
        a(f'''
        s_sub_u32 s33, s2, 256
        s_lshl_b32 s33, s33, 2
        s_add_u32 s33, s33, s20          ; item
        v_lshlrev_b32 v{V_L16}, 4, v0
        v_lshlrev_b32 v{V_L4}, 2, v0
        v_bfe_u32 v6, v0, 2, 2
        v_and_b32 v7, 3, v0
        s_lshl_b32 s23, s20, 12
        s_waitcnt lgkmcnt(0)
        ''')
        srd(a, 4, 96, 0x10000000)
        a('s_cmp_ge_u32 s33, 384\ns_cbranch_scc1 P_n1')
        srd(a, 8, 66, 512*3072)
        a('s_mul_i32 s34, s33, 2731\ns_lshr_b32 s34, s34, 16\ns_mul_i32 s36, s34, 24\ns_sub_u32 s35, s33, s36\ns_mov_b32 s36, 3072\ns_mov_b32 s76, 2\ns_branch P_go')
        a('P_n1:\ns_cmp_ge_u32 s33, 832\ns_cbranch_scc1 P_n2')
        srd(a, 8, 72, 512*3584)
        a('s_sub_u32 s35, s33, 384\ns_mul_i32 s34, s35, 2341\ns_lshr_b32 s34, s34, 16\ns_mul_i32 s36, s34, 28\ns_sub_u32 s35, s35, s36\ns_mov_b32 s36, 3584\ns_mov_b32 s76, 1\ns_branch P_go')
        a('P_n2:\ns_cmp_ge_u32 s33, 960\ns_cbranch_scc1 P_n3')
        srd(a, 8, 68, 512*1024)
        a(f's_sub_u32 s34, s33, 832\ns_and_b32 s35, s34, 7\ns_lshr_b32 s34, s34, 3\ns_mul_i32 s77, s35, {64*KB}\ns_add_u32 s77, s77, {WOC}\ns_mov_b32 s76, 0\ns_mov_b32 s36, 1024\ns_branch P_go')
        a('P_n3:')
        srd(a, 8, 74, 1792*1024)
        a(f's_sub_u32 s34, s33, 960\ns_and_b32 s35, s34, 7\ns_lshr_b32 s34, s34, 3\ns_mul_i32 s77, s35, {224*KB}\ns_add_u32 s77, s77, {W2C}\ns_mov_b32 s76, 0\ns_mov_b32 s36, 1024')
        a('P_go:')
        a('v_lshrrev_b32 v12, 3, v0\nv_mul_lo_u32 v12, v12, s36\nv_and_b32 v13, 7, v0\nv_lshl_add_u32 v12, v13, 4, v12')
        a('s_mul_i32 s37, s34, s36\ns_lshl_b32 s37, s37, 5\ns_lshl_b32 s30, s35, 7\ns_add_u32 s37, s37, s30\ns_lshl_b32 s36, s36, 3')
        for i in range(4):
            a(f's_add_u32 m0, s23, {i*1024}')
            a('buffer_load_dwordx4 v12, s[8:11], s37 offen nt lds')
            if i < 3: a('s_add_u32 s37, s37, s36')
        for i in range(4): a(f'v_mov_b32 v{32+i}, 0x3f803f80')
        a('s_cmp_eq_u32 s76, 1\ns_cbranch_scc1 P_16')
        a('''
        s_cmp_eq_u32 s76, 2
        s_cselect_b32 s30, 3, 2
        s_lshr_b32 s31, 4096, s30
        v_lshrrev_b32 v14, 5, v0
        v_lshlrev_b32 v14, s30, v14
        v_add_u32 v14, v14, v6
        v_lshlrev_b32 v14, 7, v14
        v_bfe_u32 v15, v0, 4, 1
        v_lshl_add_u32 v14, v15, 5, v14
        v_lshl_add_u32 v14, v7, 3, v14
        v_add_u32 v14, s23, v14
        v_add_u32 v15, s31, v14
        s_waitcnt vmcnt(0)
        ''')
        for kbl in range(2):
            for ft in range(2):
                r = 16 + (kbl*2+ft)*4
                a(f'ds_read_b64_tr_b16 v[{r}:{r+1}], v14 offset:{kbl*2048+ft*64}')
                a(f'ds_read_b64_tr_b16 v[{r+2}:{r+3}], v15 offset:{kbl*2048+ft*64}')
        a('s_cmp_eq_u32 s76, 2\ns_cbranch_scc1 P_q')
        a('s_lshl_b32 s30, s34, 12\ns_add_u32 s77, s77, s30\ns_waitcnt lgkmcnt(0)')
        for i in range(4): a(f'buffer_store_dwordx4 v[{16+4*i}:{19+4*i}], v{V_L16}, s[4:7], s77 offen offset:{i*1024}')
        a('s_branch P_done')
        a('P_q:')
        a(f'''
        s_and_b32 s30, s35, 7
        s_mul_i32 s77, s30, {192*KB}
        s_lshr_b32 s30, s35, 3
        s_lshl_b32 s30, s30, 12
        s_add_u32 s77, s77, s30
        s_lshr_b32 s30, s34, 1
        s_mul_i32 s30, s30, 12288
        s_add_u32 s77, s77, s30
        s_and_b32 s30, s34, 1
        s_lshl_b32 s30, s30, 11
        s_add_u32 s77, s77, s30
        s_add_u32 s77, s77, {WQC}
        s_add_u32 s78, s77, {96*KB}
        s_waitcnt lgkmcnt(0)
        ''')
        for ft in range(2):
            a(f'{MF} v[{64+16*ft}:{79+16*ft}], v[32:35], v[{16+4*ft}:{19+4*ft}], 0')
        for ft in range(2):
            a(f'{MF} v[{64+16*ft}:{79+16*ft}], v[32:35], v[{24+4*ft}:{27+4*ft}], v[{64+16*ft}:{79+16*ft}]')
        for kbl in range(2):
            for ft in range(2):
                r = 16 + (kbl*2+ft)*4
                a(f'buffer_store_dwordx4 v[{r}:{r+3}], v{V_L16}, s[4:7], s{77+ft} offen offset:{kbl*1024}')
        a(f's_mul_i32 s30, s34, 6144\ns_lshl_b32 s31, s35, 8\ns_add_u32 s30, s30, s31\ns_add_u32 s30, s30, {CSQ}')
        a('s_mov_b32 exec_lo, 0\nv_mov_b32 v64, v80\ns_mov_b64 exec, -1')
        a(f'buffer_store_dword v64, v{V_L4}, s[4:7], s30 offen')
        a('s_branch P_done')
        a('P_16:')
        a('''
        v_lshrrev_b32 v14, 4, v0
        v_lshl_add_u32 v14, v14, 3, v6
        v_lshlrev_b32 v14, 7, v14
        v_lshl_add_u32 v14, v7, 3, v14
        v_add_u32 v14, s23, v14
        v_lshrrev_b32 v15, 5, v0
        v_mul_u32_u24 v15, 3584, v15
        v_and_b32 v13, 31, v0
        v_lshl_add_u32 v15, v13, 4, v15
        s_mul_i32 s78, s34, 7168
        s_waitcnt vmcnt(0)
        ''')
        for u in range(4):
            r = 16 + u*4
            a(f'ds_read_b64_tr_b16 v[{r}:{r+1}], v14 offset:{u*32}')
            a(f'ds_read_b64_tr_b16 v[{r+2}:{r+3}], v14 offset:{u*32+512}')
        a('s_waitcnt lgkmcnt(0)')
        for u in range(4): a(f'v_mfma_f32_16x16x32_bf16 v[{40+4*u}:{43+4*u}], v[32:35], v[{16+4*u}:{19+4*u}], 0')
        for u in range(4):
            a(f'''s_lshl_b32 s30, s35, 2
            s_add_u32 s30, s30, {u}
            s_mul_i32 s31, s30, 9363
            s_lshr_b32 s31, s31, 16
            s_mul_i32 s31, s31, {112*1024-3584}
            s_lshl_b32 s30, s30, 9
            s_add_u32 s31, s31, s30
            s_add_u32 s31, s31, s78
            s_add_u32 s31, s31, {W1C}
            buffer_store_dwordx4 v[{16+4*u}:{19+4*u}], v15, s[4:7], s31 offen''')
        a(f's_lshl_b32 s30, s35, 8\ns_add_u32 s31, s30, s78\ns_add_u32 s31, s31, {CS1}')
        a('s_mov_b64 exec, 0xffff0000\nv_mov_b32 v40, v44\ns_mov_b32 exec_lo, 0\ns_mov_b32 exec_hi, 0xffff\nv_mov_b32 v40, v48\ns_mov_b32 exec_hi, 0xffff0000\nv_mov_b32 v40, v52\ns_mov_b64 exec, -1')
        a(f'buffer_store_dword v40, v{V_L4}, s[4:7], s31 offen')
        a('P_done:\nP_end:')
        self.c.vm = []; self.c.lg = []

    def prologue(self):
        a, c, o = self.a, self.c, self.o
        a.kernel('main_kernel', vgpr=512, sgpr=102, accum=256)
        a('''
        s_load_dwordx2 s[96:97], s[0:1], 64
        s_load_dwordx2 s[70:71], s[0:1], 48
        s_cmp_ge_u32 s2, 256
        s_cbranch_scc1 M_end
        v_lshrrev_b32 v1, 6, v0
        v_readfirstlane_b32 s20, v1
        v_and_b32 v0, 63, v0
        ''')
        a(IDS)
        a(f'''
        s_mov_b32 s25, 0
        s_lshl_b32 s27, s21, 11
        s_mov_b32 s39, 0
        s_mov_b32 s26, {LB0}
        v_lshlrev_b32 v{V_L16}, 4, v0
        v_lshlrev_b32 v{V_L4}, 2, v0
        v_mov_b32 v{V_ZERO}, 0
        v_mov_b32 v{V_E}, 1
        s_getreg_b32 s30, hwreg(HW_REG_XCC_ID)
        s_and_b32 s35, s30, 15
        s_add_u32 s35, s35, 1
        v_mov_b32 v54, s35
        s_lshl_b32 s33, s21, 7
        s_add_u32 s33, s33, {FID}
        s_lshl_b32 s31, s22, 2
        s_add_u32 s34, s33, s31
        ''')
        a(PUBADDR)
        a('s_waitcnt lgkmcnt(0)')
        srd(a, 4, 96, 0x10000000)
        lf = a.label('C')
        a(f's_cmp_lg_u32 s20, 3\ns_cbranch_scc1 {lf}')
        a(f's_mov_b64 exec, 1\nbuffer_store_dword v54, v{V_ZERO}, s[4:7], s34 offen sc1\ns_mov_b64 exec, -1')
        a(f'{lf}:')
        self.stamp('start'); self.rstamp(30)
        wq = self.img_items(WQC, 96*KB, 0, 96)
        for f in wq[:8]: f()
        srd(a, 16, 70, 2*MB)
        a(f'''
        v_mul_u32_u24 v{V_RR}, {RSTR}, v52
        v_lshl_add_u32 v{V_RR}, v51, 5, v{V_RR}
        s_lshl_b32 s30, s23, 8
        s_lshl_b32 s31, s24, 4
        s_add_u32 s30, s30, s31
        s_add_u32 s30, s30, s27
        s_lshl_b32 s31, s20, 2
        s_add_u32 s0, s30, s31
        s_lshl_b32 s30, s20, 6
        s_lshl_b32 s31, s22, 2
        s_add_u32 s30, s30, s31
        s_add_u32 s38, s30, s27
        v_and_b32 v50, 31, v0
        v_lshrrev_b32 v51, 5, v0
        v_lshlrev_b32 v{V_STL}, 10, v51
        v_lshl_add_u32 v{V_STL}, v50, 3, v{V_STL}
        s_lshl_b32 s30, s28, 11
        s_add_u32 s30, s30, {XS}
        v_add_u32 v{V_STL}, s30, v{V_STL}
        s_lshl_b32 s30, s20, 7
        s_add_u32 s30, s30, {T_AB}
        v_lshl_add_u32 v{V_H16}, v51, 4, s30
        v_mul_u32_u24 v{V_RW}, {RSTR}, v50
        v_lshl_add_u32 v{V_RW}, v51, 4, v{V_RW}
        s_mul_i32 s30, s20, {RW}
        v_add_u32 v{V_RW}, s30, v{V_RW}
        v_lshlrev_b32 v{V_KDUP}, 9, v51
        v_bfe_u32 v53, v0, 4, 1
        v_lshlrev_b32 v{V_W1A}, 9, v53
        v_lshl_add_u32 v{V_W1A}, v51, 8, v{V_W1A}
        v_and_b32 v53, 15, v0
        v_lshl_add_u32 v{V_W1A}, v53, 4, v{V_W1A}
        s_mul_i32 s30, s20, {SLOT}
        s_add_u32 s30, s30, {L_KV}
        v_add_u32 v{V_KA}, s30, v{V_L16}
        v_add_u32 v{V_VA0}, 2048, v{V_KA}
        v_add_u32 v{V_VA1}, 2304, v{V_KA}
        s_add_u32 s31, s30, 3072
        v_mov_b32 v55, s31
        v_and_b32 v53, 16, v0
        v_cmp_eq_u32 vcc, 0, v53
        v_cndmask_b32 v{V_VA0}, v55, v{V_VA0}, vcc
        v_cndmask_b32 v{V_VA1}, v55, v{V_VA1}, vcc
        ''')
        for f in wq[8:16]: f()
        for i in range(8):
            a(f's_xor_b32 s30, s24, {i}\ns_lshl_b32 s{S_R12+i}, s30, 12\ns_lshl_b32 s{S_R11+i}, s30, 11')
        for i in range(4):
            a(f's_add_u32 s30, s24, {i}\ns_and_b32 s30, s30, 3\ns_mul_i32 s{S_P+i}, s30, 7168')
        a(f's_mul_i32 s13, s24, {112*2048}\ns_mul_i32 s30, s20, {28*2048}\ns_add_u32 s13, s13, s30\ns_add_u32 s13, s13, {W2C}')
        a('v_lshlrev_b32 v53, 2, v51\nv_sub_u32 v53, v50, v53')
        for r in range(16):
            a(f'v_cmp_le_i32 s[{S_M+2*r}:{S_M+2*r+1}], {(r & 3) + 8*(r >> 2)}, v53')
        a('v_mov_b32 v54, 0xffff\nv_mov_b32 v55, 0xffff0000')
        for i in range(8):
            a(f'v_cndmask_b32 v52, 0, v54, s[{S_M+4*i}:{S_M+4*i+1}]')
            a(f'v_cndmask_b32 v{V_AM+i}, 0, v55, s[{S_M+4*i+2}:{S_M+4*i+3}]')
            a(f'v_or_b32 v{V_AM+i}, v52, v{V_AM+i}')
        for f in wq[16:]: f()
        a(f'buffer_load_dwordx4 v[56:59], v{V_F32}, s[4:7], 0 offen\nbuffer_load_dwordx4 v[60:63], v{V_F32}, s[4:7], s63 offen')
        a(f'v_lshlrev_b32 v50, 2, v50\nv_mul_u32_u24 v52, {8*6144}, v51\nv_add_u32 v52, v52, v50\nv_mul_u32_u24 v53, {8*7168}, v51\nv_add_u32 v53, v53, v50')
        a(f's_min_u32 s32, s20, 2\ns_lshl_b32 s30, s32, 11\ns_lshl_b32 s31, s22, 7\ns_add_u32 s30, s30, s31\ns_add_u32 s30, s30, {CSQ}')
        a(f's_mul_i32 s31, s22, 448\ns_lshl_b32 s36, s20, 7\ns_add_u32 s31, s31, s36\ns_add_u32 s31, s31, {CS1}')
        for p in range(8):
            a(f'buffer_load_dword v{64+p}, v52, s[4:7], s30 offen\nbuffer_load_dword v{72+p}, v53, s[4:7], s31 offen')
            if p < 7: a('s_add_u32 s30, s30, 6144\ns_add_u32 s31, s31, 7168')
        ld = a.label('S'); lp = a.label('S')
        a('s_mov_b64 exec, 0xffff')
        a(f'{lp}:')
        a(f'buffer_load_dword v54, v{V_L4}, s[4:7], s33 offen sc1')
        a('s_waitcnt vmcnt(0)')
        a('v_cmp_eq_u32 vcc, 0, v54')
        a(f's_cbranch_vccz {ld}')
        a(f's_add_u32 s39, s39, 1\ns_cmp_lt_u32 s39, 200000\ns_cbranch_scc1 {lp}')
        a(f'{ld}:')
        a('v_cmp_ne_u32 s[14:15], s35, v54')
        a('s_mov_b64 exec, -1')
        self.stamp('wq_arrived')
        c.vm = []; c.lg = []
    def prologue2(self):
        pass

    def body(self, mode):
        a, c, o = self.a, self.c, self.o
        emit, take, stamp = self.emit, self.take, self.stamp
        FF = '' if mode == 'fast' else 'sc1'
        DF = '' if (mode == 'fast' and o.get('plainoh', 0)) else 'sc1'
        DX = '' if (mode == 'fast' and o.get('plainx', 1)) else 'sc1'
        LM = f'M_layer_{mode}'; LM2 = f'M_first_{mode}'
        VX = V_T3
        a(f's_lshl_b32 s31, s28, 15\ns_add_u32 s30, s31, {XF}\nv_add_u32 v{VX}, s30, v{V_L16}')
        a('s_lshl_b32 s30, s20, 7\ns_add_u32 s34, s27, s30')
        a(f's_branch {LM2}')
        a(f'{LM}:')
        self.poll('s34', 0, '0xffffffff')
        a(f'{LM2}:')
        stamp('P1_start')
        ST = 240; MB_ = 248; RA = 252; RA2 = 254
        def load_stats():
            for i in range(4):
                a(f'buffer_load_dwordx2 v[{ST+2*i}:{ST+2*i+1}], v{V_STL}, s[4:7], 0 offen offset:{i*256} sc1'); c.vm.append('stat')
        def xload(i):
            a(f'buffer_load_dwordx4 {xreg(i)}, v{VX}, s[4:7], s{S_R12+i//4} offen offset:{(i%4)*1024} sc1'); c.vm.append(('x', i))
        def stats_code(scale2):
            L = [('vw', 'stat')]
            for k in range(2): L += [f'v_add_f32 v{ST+k}, v{ST+k}, v{ST+2+k}', f'v_add_f32 v{ST+4+k}, v{ST+4+k}, v{ST+6+k}']
            for k in range(2): L += [f'v_add_f32 v{ST+k}, v{ST+k}, v{ST+4+k}']
            for k in range(2): L += [f'v_mov_b32 v{ST+2+k}, v{ST+k}']
            L += [f'v_mov_b32 v{MB_+2}, 0']
            for k in range(2): L += [f'v_permlane32_swap_b32 v{ST+k}, v{ST+2+k}']
            for k in range(2): L += [f'v_add_f32 v{ST+k}, v{ST+k}, v{ST+2+k}']
            S, Q = ST, ST+1
            L += [f'v_mul_f32 v{S}, 0xbb000000, v{S}', f'v_mul_f32 v{Q}, 0x3b000000, v{Q}', f'v_fma_f32 v{Q}, -v{S}, v{S}, v{Q}',
                  f'v_max_f32 v{Q}, 0, v{Q}', f'v_add_f32 v{Q}, {hex(f2u(1e-5))}, v{Q}', f'v_rsq_f32 v{RA}, v{Q}',
                  f'v_cvt_pk_bf16_f32 v{ST+2}, v{S}, v{S}', f'v_and_b32 v{ST+3}, 0xffff0000, v{ST+2}', f'v_sub_f32 v{ST+3}, v{S}, v{ST+3}',
                  f'v_cmp_gt_u32 vcc, 32, v0', f'v_cvt_pk_bf16_f32 v{ST+2}, v{S}, v{ST+3}', f'v_mov_b32 v{MB_+3}, 0', f'v_mov_b32 v{RA+1}, v{RA}',
                  f'v_cndmask_b32 v{MB_}, 0, v{ST+2}, vcc', f'v_mov_b32 v{MB_+1}, v{MB_}',
                  f'v_mul_f32 v{RA2}, {hex(f2u(scale2))}, v{RA}', f'v_mov_b32 v{RA2+1}, v{RA2}']
            return L
        NPRE = o.get('npre', 10)
        TADR = (V_T1, V_T2)
        WB = 160; ACC = 192
        AQ, AK, AV = ACC, ACC+16, ACC+32
        for i in range(4): xload(i)
        load_stats()
        for i in range(4, NPRE): xload(i)
        CT = AQ
        a(f'''
        v_lshrrev_b32 v{CT}, 1, v0
        v_mul_u32_u24 v{CT+1}, {SLOT}, v{CT}
        v_and_b32 v{CT+2}, 1, v0
        v_mul_u32_u24 v{CT+2}, 1056, v{CT+2}
        v_add_u32 v{CT+1}, v{CT+1}, v{CT+2}
        v_add_u32 v{CT+1}, {L_KV+3072}, v{CT+1}
        s_lshl_b32 s30, s21, 2
        v_add_u32 v{CT}, s30, v{CT}
        v_mov_b32 v{CT+2}, 0x3f803f80
        v_cmp_le_u32 vcc, 8, v{CT}
        v_cndmask_b32 v{CT+4}, 0, v{CT+2}, vcc
        v_mov_b32 v{CT+5}, v{CT+4}
        v_mov_b32 v{CT+6}, v{CT+4}
        v_mov_b32 v{CT+7}, v{CT+4}
        s_lshl_b32 s30, s22, 18
        s_lshl_b32 s31, s28, 12
        s_add_u32 s30, s30, s31
        s_add_u32 s96, s30, s26
        s_lshl_b32 s31, s22, 7
        s_add_u32 s30, s27, s31
        s_add_u32 s35, s30, {FKV}
        s_barrier
        s_mov_b64 exec, 0xffffff
        ds_write_b128 v{CT+1}, v[{CT+4}:{CT+7}]
        s_mov_b64 exec, -1
        '''); c.lg.append('ones')
        wn = [0]
        def wread(i, seg):
            r = WB + 4*(wn[0] % 8); wn[0] += 1
            a(f'ds_read_b128 {v(r,4)}, v{TADR[(i//4)%2]} offset:{seg*4096 + (i % 4)*1024}'); c.lg.append(('w', i, seg))
            return v(r, 4)
        def wadr(i): a(f'v_mad_u32_u24 v{TADR[(i//4)%2]}, s{S_R12+i//4}, 3, v{V_L16}')
        W = {}
        wadr(0)
        for i in range(3):
            for seg in (1, 2): W[i, seg] = wread(i, seg)
        def cf_get():
            a(f'v_and_b32 v{AQ+8}, 31, v0\nv_lshlrev_b32 v{AQ+8}, 3, v{AQ+8}\nv_add_u32 v{AQ+8}, {T_CF}, v{AQ+8}')
            for tl in range(7): a(f'ds_read_b64 a[{A_CQ+2*tl}:{A_CQ+2*tl+1}], v{AQ+8} offset:{tl*256}')
            a('s_waitcnt lgkmcnt(0)')
        self.layer0(cf_get)
        sc = stats_code(0.25*LOG2E)
        for i in range(32):
            c.wait(vm=('x', i), lg=('w', i, 2))
            a(f'{MF} {v(AK,16)}, {W[i,1]}, {xreg(i)}, {"0" if i == 0 else v(AK,16)}')
            if i + 3 < 32:
                if (i+3) % 4 == 0: wadr(i+3)
                W[i+3, 1] = wread(i+3, 1)
            if i + NPRE < 32: xload(i + NPRE)
            a(f'{MF} {v(AV,16)}, {xreg(i)}, {W[i,2]}, {"0" if i == 0 else v(AV,16)}')
            if i + 3 < 32: W[i+3, 2] = wread(i+3, 2)
            if i >= 4: take(sc, 2)
            if i == 20:
                a(f'v_and_b32 v{ST}, 124, v{V_L4}\ns_lshl_b32 s30, s20, 7\ns_add_u32 s30, s30, {T_AB}\nv_add_u32 v{ST}, s30, v{ST}')
                a(f'ds_write_b32 v{ST}, v{RA}'); c.lg.append('tab')
            if i == 22:
                for q in range(2): a(f'ds_read_b128 {v(ST+4*q,4)}, v{V_H16} offset:{q*32}'); c.lg.append('ta0')
                for q in range(2): a(f'ds_read_b128 {v(AQ+4*q,4)}, v{V_H16} offset:{64+q*32}'); c.lg.append('ta0')
            if i == 21:
                a(f'{MF} {v(AK,16)}, {a_(A_CQ+2,4)}, {v(MB_,4)}, {v(AK,16)}')
                a(f'{MF} {v(AV,16)}, {v(MB_,4)}, {a_(A_CQ+4,4)}, {v(AV,16)}')
            if i == 29: wadr(0)
        assert not sc
        for i in range(4): W[i, 0] = wread(i, 0)
        wadr(4)
        for i in range(4, 6): W[i, 0] = wread(i, 0)
        stamp('P1_kv')
        for r in range(0, 16, 2): a(pk('mul', AK+r, RA, AK+r))
        for i in range(8): a(f'v_cvt_pk_bf16_f32 v{AK+i}, v{AK+2*i}, v{AK+2*i+1}')
        for i in range(2): emit(('vm', f'buffer_store_dwordx4 {v(AK+4*i,4)}, v{V_L16}, s[4:7], s96 offen offset:{i*1024} sc1', 'st'))
        for r in range(0, 8, 2): a(pk('mul', AV+r, ST+r, AV+r))
        for r in range(0, 8, 2): a(pk('mul', AV+8+r, AQ+r, AV+8+r))
        for i in range(8): a(f'v_cvt_pk_bf16_f32 v{AK+8+i}, v{AV+2*i}, v{AV+2*i+1}')
        for i in (2, 3): emit(('vm', f'buffer_store_dwordx4 {v(AK+4*i,4)}, v{V_L16}, s[4:7], s96 offen offset:{i*1024} sc1', 'st'))
        epi = [('ds', f'ds_write_b128 v{V_KA}, {v(AK+4*i,4)} offset:{8*SLOT+OFS[i]}', 'kvw') for i in range(4)]
        epi += ['s_lshl_b32 s33, s20, 2\ns_add_u32 s33, s33, s35']
        QSIG = o.get('qsig', 18)
        a(f'{MF} {v(AQ,16)}, {a_(A_CQ,4)}, {v(MB_,4)}, 0')
        for i in range(32):
            if i % 2 == 0: c.wait(lg=('w', i+1, 0))
            a(f'{MF} {v(AQ,16)}, {W[i,0]}, {xreg(i)}, {v(AQ,16)}')
            if i + 6 < 32:
                if (i+6) % 4 == 0: wadr(i+6)
                W[i+6, 0] = wread(i+6, 0)
            take(epi, 1)
            if i == QSIG:
                c.wait(vm='st'); self.wsignal('s33', 0, 'sc1')
            if i == QSIG + 2 and DF == '' and o.get('touch', 1):
                a(f's_lshl_b32 s30, s28, 15\ns_lshl_b32 s31, s22, 11\ns_add_u32 s30, s30, s31\ns_add_u32 s30, s30, {OF}\nv_lshlrev_b32 v{AK}, 7, v0')
                a(f's_mov_b64 exec, 0xffff\nbuffer_load_dword v{AK+1}, v{AK}, s[4:7], s30 offen sc1\ns_mov_b64 exec, -1')
            if i == 24:
                a('s_lshr_b32 s30, s20, 1\ns_sub_u32 s30, 2, s30\ns_min_u32 s31, s30, s21\ns_lshl_b32 s32, s31, 11\ns_sub_u32 s35, s35, s32')
            if i == 26:
                a('s_and_b32 s32, s20, 1\ns_lshl_b32 s32, s32, 1\ns_lshl_b32 s32, 3, s32\ns_cmp_eq_u32 s30, s31\ns_cselect_b32 s32, s32, 1\ns_mov_b32 s33, 0')
            if i == 28:
                a(f's_lshl_b32 s100, s22, 18\ns_add_u32 s100, s100, s26\ns_mul_i32 s101, s20, {2*SLOT}\ns_add_u32 s101, s101, {L_KV}')
        QP = 48
        stamp('P1_epi')
        def qepi():
            a('s_mov_b64 exec, -1')
            for r in range(0, 16, 2): a(pk('mul', AQ+r, RA2, AQ+r))
            for i in range(8): a(f'v_cvt_pk_bf16_f32 v{QP+i}, v{AQ+2*i}, v{AQ+2*i+1}')
        ldn = a.label('S'); lpn = a.label('S')
        a('s_mov_b64 exec, s[32:33]')
        a(f'buffer_load_dword v{V_T0}, v{V_L4}, s[4:7], s35 offen sc1')
        qepi()
        a('s_mov_b64 exec, s[32:33]')
        a(f'{lpn}:\ns_waitcnt vmcnt(0)\nv_cmp_ne_u32 vcc, v{V_E}, v{V_T0}\ns_cbranch_vccz {ldn}')
        a(f'buffer_load_dword v{V_T0}, v{V_L4}, s[4:7], s35 offen sc1')
        a(f's_add_u32 s39, s39, 1\ns_cmp_lt_u32 s39, 200000\ns_cbranch_scc1 {lpn}')
        a(f'{ldn}:\ns_mov_b64 exec, -1')
        stamp('kv_sync')
        lv = a.label('K'); ld = a.label('K')
        order = [(sl, i) for i in (0, 1, 2, 3) for sl in range(2)]
        a(f's_cmp_eq_u32 s30, s31\ns_cbranch_scc1 {lv}')
        a(f'v_mov_b32 v{V_T2}, 0x7ff00000')
        for sl, i in order:
            a(f's_add_u32 m0, s101, {sl*SLOT+OFS[i]-(i*1024 if i < 2 else 0)}')
            if i < 2: a(f'buffer_load_dwordx4 v{V_KDUP}, s[4:7], s100 offen offset:{i*1024} sc1 lds')
            else: a(f'buffer_load_dwordx4 v{V_T2}, s[4:7], 0 offen sc1 lds')
        a(f's_branch {ld}')
        a(f'{lv}:')
        a('s_lshl_b32 s31, s21, 2\ns_lshl_b32 s32, s20, 1\ns_add_u32 s31, s31, s32\ns_sub_u32 s31, s31, 8\ns_lshl_b32 s31, s31, 12\ns_add_u32 s100, s100, s31\ns_add_u32 s33, s100, 4096')
        for sl, i in order:
            a(f's_add_u32 m0, s101, {sl*SLOT+OFS[i]-i*1024}')
            a(f'buffer_load_dwordx4 v{V_L16}, s[4:7], {("s100","s33")[sl]} offen offset:{i*1024} sc1 lds')
        a(f'{ld}:')
        c.vm = ['k0', 'k0', 'k1', 'k1', 'vv', 'vv', 'vv', 'vv']
        a(f's_lshl_b32 s30, s28, 15\ns_lshl_b32 s31, s22, 11\ns_add_u32 s30, s30, s31\ns_add_u32 s96, s30, {OF}')
        c.lg0()
        c.wait(vm='k0'); a('s_barrier')
        stamp('kv_dma')
        WO_ = 192
        def wo_items():
            it = []
            for i in range(16):
                def f(i=i):
                    if i == 0: a(f's_lshl_b32 s100, s24, 16\ns_lshl_b32 s101, s20, 14\ns_add_u32 s100, s100, s101\ns_add_u32 s100, s100, {WOC}')
                    elif i % 4 == 0: a('s_add_u32 s100, s100, 4096')
                    a(f'buffer_load_dwordx4 {v(WO_+4*i,4)}, v{V_L16}, s[4:7], s100 offen offset:{(i%4)*1024}'); c.vm.append('pf')
                it.append(f)
            return it
        def w2a(p, kb, ft): return (p*7 + kb)*8 + ft*4
        def w2_item(p, kbs):
            def f():
                a(f's_lshl_b32 s12, s{S_P+p}, 1\ns_add_u32 s12, s12, s13')
                if kbs[0]: a(f's_add_u32 s12, s12, {kbs[0]*2048}')
                for n, kb in enumerate(kbs):
                    for ft in range(2):
                        a(f'buffer_load_dwordx4 {a_(w2a(p,kb,ft),4)}, v{V_L16}, s[4:7], s12 offen offset:{n*2048+ft*1024}')
            return lambda: self.layer0(f)
        w2 = [w2_item(p, kbs) for kbs in ((0,1), (2,3), (4,5), (6,)) for p in range(4)]
        pf = self.img_items(W1C, 112*KB, 0, 88) + wo_items()
        pt = []
        if DF == '' and o.get('touch', 1):
            def htouch(part):
                def f():
                    if part == 0: a(f's_mul_i32 s30, s28, {112*1024}\ns_mul_i32 s31, s22, 7168\ns_add_u32 s30, s30, s31\ns_add_u32 s30, s30, {HF}\nv_lshlrev_b32 v{V_T5}, 7, v0')
                    a(f's_mov_b64 exec, 0x3fff\nbuffer_load_dword v{V_T4}, v{V_T5}, s[4:7], s30 offen sc1\ns_mov_b64 exec, -1\ns_add_u32 s30, s30, 1792'); c.vm.append('pf')
                return f
            pt = [htouch(p) for p in range(4)]
        pf = pf + pt
        if o.get('nopf'): pf = []
        NW2A = o.get('w2a', 6)
        KF = 56; NKF = 6; SBUF = (80, 96); SM = 112; NEG = 128; PB = 144; VF = 160; OA = 176
        MX = V_T0
        st = {}
        def pfi():
            if pf: pf.pop(0)()
        tail = []
        for hd in range(2):
            q = v(QP+4*hd, 4); VA = (V_VA0, V_VA1)[hd]
            kcnt = [0]
            def kread(blk, hd=hd, kcnt=kcnt):
                slot = kcnt[0] % NKF; kcnt[0] += 1
                a(f'ds_read_b128 {v(KF+4*slot,4)}, v{V_KA} offset:{blk*SLOT+hd*1024}'); c.lg.append(('k', blk))
                return v(KF+4*slot, 4)
            bufs = {0: SBUF[0], 8: SM, 1: SBUF[1], 2: NEG, 3: PB, 4: SBUF[0], 5: SBUF[1], 6: NEG, 7: PB}
            if hd == 0:
                kr = {}
                for b in [0, 8, 1, 2, 3, 4]: kr[b] = kread(b)
            else:
                kr = st['kr']
            def qk(b, dst, cc='0', wt=None):
                c.wait(lg=('k', b if wt is None else wt)); a(f'{MF} {v(dst,16)}, {kr[b]}, {q}, {cc}')
            if hd == 0:
                qk(0, bufs[0], wt=8); qk(8, bufs[8])
            qk(1, bufs[1], wt=4)
            kr[5] = kread(5); kr[6] = kread(6)
            qk(2, bufs[2])
            kr[7] = kread(7)
            for r in range(16):
                a(f'v_cndmask_b32 v{SM+r}, v{SBUF[0]+r}, v{SM+r}, s[{S_M+2*r}:{S_M+2*r+1}]')
                if r == 7: qk(3, bufs[3])
            a(f'v_max_f32 v{MX}, v{SM}, v{SM+1}')
            qk(4, bufs[4])
            take(tail, 99)
            for i in range(1, 8): a(f'v_max3_f32 v{MX}, v{SM+2*i}, v{SM+2*i+1}, v{MX}')
            k2 = {}
            for blk in range(1, 8):
                b = bufs[blk]
                for i in range(8): a(f'v_max3_f32 v{MX}, v{b+2*i}, v{b+2*i+1}, v{MX}')
                if blk + 4 <= 7: qk(blk+4, bufs[blk+4], wt=7)
                if blk == 4:
                    for bb in (1, 2, 3): k2[bb] = kread(bb)
                if hd == 0 and blk == 6:
                    c.vm0(); a('s_barrier')
                if hd == 1 and blk % 2: pfi()
            kr = k2
            if o.get('fine'): stamp(f'A{hd}_p1')
            def vread(blk, hf, r):
                a(f'ds_read_b128 {v(r,4)}, v{VA} offset:{blk*SLOT+hf*1056}'); c.lg.append(('v', blk))
            a(f'v_mov_b32 v{NEG}, v{MX}')
            vread(0, 0, VF); vread(0, 1, VF+4)
            a(f'v_permlane32_swap_b32 v{NEG}, v{MX}\nv_max_f32 v{MX}, v{NEG}, v{MX}')
            a(f'v_sub_f32 v{NEG}, 0, v{MX}\nv_sub_f32 v{NEG+1}, 0, v{MX}')
            for r in range(2, 16, 2): a(f'v_pk_mov_b32 v[{NEG+r}:{NEG+r+1}], v[{NEG}:{NEG+1}], v[{NEG}:{NEG+1}]')
            for r in range(0, 16, 2): a(pk('add', SM+r, SM+r, NEG))
            vread(8, 0, VF+8); vread(8, 1, VF+12)
            qk(1, SBUF[1], v(NEG,16), wt=3)
            for r in range(16):
                a(f'v_exp_f32 v{SM+r}, v{SM+r}')
                if r % 2 == 0 and r >= 2: a(f'v_cvt_pk_bf16_f32 v{SM+(r-2)//2}, v{SM+r-2}, v{SM+r-1}')
                if r in (2, 8, 14): pfi()
            a(f'v_and_b32 v{SM+8}, v{V_AM}, v{SM}')
            a(f'v_cvt_pk_bf16_f32 v{SM+7}, v{SM+14}, v{SM+15}')
            for i in range(8):
                if i: a(f'v_and_b32 v{SM+8+i}, v{V_AM+i}, v{SM+i}')
                a(f'v_xor_b32 v{SM+i}, v{SM+8+i}, v{SM+i}')
            pend = [(v(VF,4), v(SM,4), ('v',8)), (v(VF+4,4), v(SM+4,4), None), (v(VF+8,4), v(SM+8,4), None), (v(VF+12,4), v(SM+12,4), None)]
            first = [True]
            if o.get('fine'): stamp(f'A{hd}_mg')
            def pv():
                A, B, tg = pend.pop(0)
                if tg: c.wait(lg=tg)
                a(f'{MF} {v(OA,16)}, {A}, {B}, {"0" if first[0] else v(OA,16)}'); first[0] = False
            nkr = {}
            q1 = v(QP+4, 4)
            for blk in range(1, 8):
                b = SBUF[blk % 2]; p = PB + 8*(blk % 2); vf = VF + 8*((blk+1) % 2)
                npv = len(pend)
                if blk + 1 < 8: qk(blk+1, SBUF[(blk+1) % 2], v(NEG,16))
                slots = (2, 5, 8, 11) if npv == 4 else (4, 10)
                for r in range(16):
                    a(f'v_exp_f32 v{b+r}, v{b+r}')
                    if r % 2 == 0 and r >= 2: a(f'v_cvt_pk_bf16_f32 v{p+(r-2)//2}, v{b+r-2}, v{b+r-1}')
                    if r in slots: pv()
                    if r == 6:
                        if blk + 3 < 8: kr[blk+3] = kread(blk+3)
                        vread(blk, 0, vf)
                        if blk == 7: vread(blk, 1, vf+4)
                    if r == 15 and blk < 7: vread(blk, 1, vf+4)
                    if r in (1, 13) or (r == 8 and blk % 3 == 0): pfi()
                    if hd == 0 and blk == 6 and 8 <= r < 14:
                        bb = [0, 8, 1, 2, 3, 4][r-8]; sl = r-8
                        a(f'ds_read_b128 {v(KF+4*sl,4)}, v{V_KA} offset:{bb*SLOT+1024}'); c.lg.append(('k', bb)); nkr[bb] = v(KF+4*sl, 4)
                    if hd == 0 and blk == 7 and r == 0: c.wait(lg=('k', 8)); a(f'{MF} {v(SBUF[0],16)}, {nkr[0]}, {q1}, 0')
                    if hd == 0 and blk == 7 and r == 7: a(f'{MF} {v(SM,16)}, {nkr[8]}, {q1}, 0')
                    if blk == 7 and r == 13:
                        pend.append((v(vf,4), v(p,4), ('v', blk))); pv()
                a(f'v_cvt_pk_bf16_f32 v{p+7}, v{b+14}, v{b+15}')
                if blk < 7: pend += [(v(vf,4), v(p,4), ('v', blk)), (v(vf+4,4), v(p+4,4), None)]
                else: pend += [(v(vf+4,4), v(p+4,4), None)]
                if hd == 1 and blk == 1:
                    c.wait(vm='st'); self.wsignal(SJ, 512, FF)
                if hd == 1 and blk >= 2 and 16 - len(w2) < NW2A: w2.pop(0)()
            st['kr'] = nkr
            if o.get('fine'): stamp(f'A{hd}_p2')
            pv()
            tail = [f'v_rcp_f32 v{OA+8}, v{OA+8}']
            tail += [f'v_mul_f32 v{OA+r}, v{OA+r}, v{OA+8}' for r in range(8)]
            tail += [f'v_cvt_pk_bf16_f32 v{OA+12+i}, v{OA+2*i}, v{OA+2*i+1}' for i in range(4)]
            tail += [('vm', f'buffer_store_dwordx4 {v(OA+12,4)}, v{V_L16}, s[4:7], s96 offen offset:{hd*1024} {DF}', 'st')]
            if hd == 0: st['slotmap'] = True
        OB = 48; AC = 112
        a(f's_lshl_b32 s30, s29, 15\ns_lshl_b32 s31, s20, 13\ns_add_u32 s30, s30, s31\ns_add_u32 s30, s30, {OF}\nv_add_u32 v{VX}, s30, v{V_L16}')
        a('s_mov_b32 s31, 4096\ns_mov_b32 s33, 36864')
        a(f'v_add_u32 v{V_T1}, {L_S0}, v{V_RW}\nv_add_u32 v{V_T2}, {L_S1}, v{V_RW}')
        take(tail, 99)
        assert not pf, len(pf)
        stamp('P2_done')
        self.poll('s27', 512, 's[36:37]', hook=lambda: self.wsignal(SJ, 512+256, FF))
        def oload(t, k):
            so = ('0', 's31', 's63', 's33')[t*2 + k//4]
            a(f'buffer_load_dwordx4 {v(OB+(t*8+k)*4,4)}, v{VX}, s[4:7], {so} offen offset:{(k%4)*1024} sc1'); c.vm.append(('o', t, k))
        for t in range(2):
            for k in range(0, 8, 2): oload(t, k)
        def omf(t, k, fill=None):
            c.wait(vm=('o', t, k))
            for ft in range(2):
                acc = v(AC+(t*2+ft)*16, 16)
                a(f'{MF} {acc}, {v(WO_+(k*2+ft)*4,4)}, {v(OB+(t*8+k)*4,4)}, {"0" if k == 0 else acc}')
                if fill: take(fill, 2)
        self.poll('s27', 512+256, 's[36:37]')
        stamp('sync_o')
        for t in range(2):
            for k in range(1, 8, 2): oload(t, k)
        for t in range(2):
            for k in range(0, 8, 2): omf(t, k)
        a('s_barrier')
        def red_write_items(t, adr):
            return [('ds', f'ds_write_b128 v{adr}, {v(AC+(t*2+ft)*16+4*q,4)} offset:{ft*128+q*32}', 'rw') for ft in range(2) for q in range(4)]
        def red_read(buf, D, adr):
            L = [f'v_add_u32 v{adr}, {buf}, v{V_RR}']
            for src in range(4):
                L.append(('ds', f'ds_read_b128 {v(D+src*8,4)}, v{adr} offset:{src*RW}', ('rr', D, src)))
                L.append(('ds', f'ds_read_b128 {v(D+src*8+4,4)}, v{adr} offset:{src*RW+16}', ('rr', D, src)))
            return L
        def red_add(t, D, usepk=True):
            L = []
            for src in range(4):
                if src % 2 == 0: L.append(('lw', ('rr', D, src+1)))
                if usepk:
                    for i in range(0, 8, 2): L.append(pk('add', V_RES+8*t+i, V_RES+8*t+i, D+src*8+i))
                else:
                    for i in range(8): L.append(f'v_add_f32 v{V_RES+8*t+i}, v{V_RES+8*t+i}, v{D+src*8+i}')
            return L
        for k in range(1, 8, 2): omf(0, k)
        omf(1, 1)
        rw0 = red_write_items(0, V_T1)
        for k in range(3, 8, 2): omf(1, k, rw0)
        take(red_write_items(1, V_T2), 99)
        c.lg0(); a('s_barrier')
        stamp('P3_mfma')
        take(red_read(L_S0, 48, V_T1) + red_read(L_S1, 80, V_T2), 99)
        pa = self.publish(0, V_RES, 112, DX); pb = self.publish(1, V_RES+8, 120, DX)
        take(red_add(0, 48), 99); take(pa, 5)
        take(red_add(1, 80), 99); take(pb, 5)
        a('s_barrier')
        while pa or pb: take(pa, 1); take(pb, 1)
        a(f's_lshl_b32 s31, s28, 15\ns_add_u32 s30, s31, {XF}\nv_add_u32 v{VX}, s30, v{V_L16}')
        for f in self.img_items(W1C, 112*KB, 88, 112): f()
        a('s_waitcnt vmcnt(6)')
        a(f's_mov_b32 exec_lo, 1\ns_mov_b32 exec_hi, 1\nbuffer_store_dword v{V_E}, v{V_L4}, s[4:7], {SX} offen offset:1024 {FF}\ns_mov_b64 exec, -1')
        stamp('P3_pub')
        self.poll('s34', 1024, '0xffffffff')
        stamp('sync_x2')
        AC4 = 192
        for i in range(4): xload(i)
        load_stats()
        for i in range(4, NPRE): xload(i)
        a('s_barrier')
        wn[0] = 0
        def w1adr(i): a(f'v_mad_u32_u24 v{TADR[(i//4)%2]}, s{S_R11+i//4}, 7, v{V_W1A}')
        def w1read(i, tl, ring=8):
            r = WB + 4*(wn[0] % ring); wn[0] += 1
            a(f'ds_read_b128 {v(r,4)}, v{TADR[(i//4)%2]} offset:{(i%4)*3584+tl*1024}'); c.lg.append(('w', i, tl))
            return v(r, 4)
        seq = [(i, tl) for i in range(32) for tl in range(3)]
        W = {}; AH = 6
        w1adr(0)
        for n in range(AH): W[seq[n]] = w1read(*seq[n])
        sc = stats_code(-LOG2E)
        for n, (i, tl) in enumerate(seq):
            if tl == 0: c.wait(vm=('x', i), lg=('w', i, 2))
            acc = v(AC4+16*tl, 16)
            a(f'{MF} {acc}, {W[i,tl]}, {xreg(i)}, {"0" if i == 0 else acc}')
            if n + AH < len(seq):
                ii, tt = seq[n+AH]
                if tt == 0 and ii % 4 == 0: w1adr(ii)
                W[ii, tt] = w1read(ii, tt)
            if tl == 1 and i + NPRE < 32: xload(i + NPRE)
            if i >= 4: take(sc, 1)
            if (i, tl) == (24, 2):
                a(f's_mul_i32 s30, s28, {112*1024}\ns_mul_i32 s31, s22, 7168\ns_add_u32 s30, s30, s31\ns_add_u32 s96, s30, {HF}\ns_add_u32 s97, s96, 4096')
            if (i, tl) == (16, 2):
                for t2 in range(3): a(f'{MF} {v(AC4+16*t2,16)}, {a_(A_C1+2*t2,4)}, {v(MB_,4)}, {v(AC4+16*t2,16)}')
            if (i, tl) == (30, 2): w1adr(0)
        assert not sc
        wn[0] = 0
        for tl in range(3): W[tl, 3] = w1read(tl, 3, 4)
        stamp('P4_A')
        A3 = 176; E = ST
        def silu_items(accb, kb, usepk):
            L = []
            if usepk:
                for r in range(0, 8, 2): L.append(pk('mul', E+r, RA2, accb+r))
                for r in range(8):
                    L.append(f'v_exp_f32 v{E+r}, v{E+r}')
                    if r % 2: L.append(pk('mul', accb+r-1, RA, accb+r-1))
                for r in range(0, 8, 2): L.append(f'v_pk_add_f32 v[{E+r}:{E+r+1}], v[{E+r}:{E+r+1}], 1.0 op_sel_hi:[1,0]')
                for r in range(8): L.append(f'v_rcp_f32 v{E+r}, v{E+r}')
                for r in range(0, 8, 2): L.append(pk('mul', accb+r, accb+r, E+r))
            else:
                for r in range(8): L.append(f'v_mul_f32 v{E+r}, v{RA2}, v{accb+r}')
                for r in range(8): L += [f'v_exp_f32 v{E+r}, v{E+r}', f'v_mul_f32 v{accb+r}, v{RA}, v{accb+r}']
                for r in range(8): L.append(f'v_add_f32 v{E+r}, 1.0, v{E+r}')
                for r in range(8): L.append(f'v_rcp_f32 v{E+r}, v{E+r}')
                for r in range(8): L.append(f'v_mul_f32 v{accb+r}, v{accb+r}, v{E+r}')
            for i in range(4): L.append(f'v_cvt_pk_bf16_f32 v{accb+i}, v{accb+2*i}, v{accb+2*i+1}')
            L.append(('vm', f'buffer_store_dwordx4 {v(accb,4)}, v{V_L16}, s[4:7], {"s96" if kb < 4 else "s97"} offen offset:{(kb%4)*1024} {DF}', ('hs', kb)))
            return L
        NB = o.get('p4nb', 3); NS0 = o.get('ns0', 3)
        epi = []
        for kb in range(NB): epi += silu_items(AC4+8*kb, kb, False)
        per = -(-len(epi) // 31)
        a(f'{MF} {v(A3,16)}, {a_(A_C1+6,4)}, {v(MB_,4)}, 0')
        for i in range(32):
            if i % 2 == 0: c.wait(lg=('w', i+1, 3))
            a(f'{MF} {v(A3,16)}, {W[i,3]}, {xreg(i)}, {v(A3,16)}')
            if i + 3 < 32:
                if (i+3) % 4 == 0: w1adr(i+3)
                W[i+3, 3] = w1read(i+3, 3, 4)
            if i >= 1: take(epi, per)
            if i % 3 == 0 and w2: w2.pop(0)()
        take(epi, 99)
        assert not w2
        H0, H1, H2, H3 = VX, V_T2, V_T4, V_T5
        a(f's_mul_i32 s30, s29, {112*1024}\ns_mul_i32 s31, s20, {28*1024}\ns_add_u32 s30, s30, s31\ns_add_u32 s30, s30, {HF}')
        a(f'v_add_u32 v{H0}, s30, v{V_L16}\nv_add_u32 v{H1}, 4096, v{H0}\nv_add_u32 v{H2}, {112*1024}, v{H0}\nv_add_u32 v{H3}, {116*1024}, v{H0}')
        for kb in range(NB, 7):
            take(silu_items(AC4+8*kb if kb < 6 else A3, kb, True), 99)
            if kb == max(NS0, NB) :
                c.wait(vm=('hs', NS0-1)); self.wsignal(SJ, 1536, FF)
        stamp('P4_epi')
        HB = 48; NH = 16
        self.poll('s27', 1536, 's[36:37]', hook=lambda: self.wsignal(SJ, 1536+256, FF))
        stamp('sync_h')
        hseq = [(t, p, kb) for t in range(2) for p in range(4) for kb in range(NS0)] + [(t, p, kb) for t in range(2) for p in range(4) for kb in range(NS0, 7)]
        N0 = 8*NS0; NT0 = N0 + 4*(7-NS0)
        def hload(n):
            t, p, kb = hseq[n]
            a(f'buffer_load_dwordx4 {v(HB+4*(n%NH),4)}, v{(H0,H1,H2,H3)[t*2+kb//4]}, s[4:7], s{S_P+p} offen offset:{(kb%4)*1024} sc1'); c.vm.append(('h', n))
        for n in range(NH): hload(n)
        a('s_barrier')
        a(f'v_add_u32 v{V_T1}, {L_S1}, v{V_RW}')
        RD = 176; RADR = 208; PT = 212
        a(f's_add_u32 {SX}, {SX}, 32768\ns_add_u32 s34, s34, 32768')
        fill = []
        wqre = self.img_items(WQC, 96*KB, 0, 96)
        seen = set()
        for n in range(56):
            t, p, kb = hseq[n]
            if n == o.get('plpos', 3):
                a(f'buffer_load_dword v{V_T0}, v{V_L4}, s[4:7], s27 offen offset:{1536+256} sc1'); c.vm.append('pl')
            if n + NH == N0:
                lok = a.label('S')
                c.wait(vm='pl')
                a(f'v_cmp_ne_u32 vcc, v{V_E}, v{V_T0}\ns_and_b64 vcc, vcc, s[36:37]\ns_cbranch_scc0 {lok}')
                q0 = list(c.vm)
                self.poll('s27', 1536+256, 's[36:37]')
                a(f'{lok}:')
                c.vm = q0
            c.wait(vm=('h', n))
            for ft in range(2):
                acc = v(AC+(t*2+ft)*16, 16)
                a(f'{MF} {acc}, {a_(w2a(p,kb,ft),4)}, {v(HB+4*(n%NH),4)}, {acc if t in seen else "0"}')
                if n > NT0: take(fill, 1 if n <= NT0+4 else 5)
            seen.add(t)
            if n + NH < 56: hload(n + NH)
            elif wqre: wqre.pop(0)()
            if n == NT0: fill = red_write_items(0, V_T1)
            if n == NT0 + 5:
                c.lg0(); a('s_barrier')
                fill = red_read(L_S1, RD, RADR) + ['s_nop 0']*1 + red_add(0, RD, False) + self.publish(0, V_RES, PT, DX, usepk=False)
        take(fill, 99)
        stamp('P5_kloop')
        l = a.label('F')
        a(f's_cmp_eq_u32 s25, 0\ns_cbranch_scc1 {l}')
        a(f'buffer_store_dwordx4 v[{PT}:{PT+3}], v{V_XROW}, s[16:19], 0 offen')
        a(f'{l}:')
        a('s_barrier')
        take(red_write_items(1, V_T1), 99)
        c.lg0(); a('s_barrier')
        take(red_read(L_S1, RD, RADR), 99)
        c.wait(vm='st'); self.wsignal(SX, 0, FF)
        take(red_add(1, RD), 99)
        p1 = self.publish(1, V_RES+8, PT, DX)
        take(p1, 4)
        lf = a.label('F')
        a(f's_cmp_lg_u32 s25, 0\ns_cbranch_scc1 {lf}')
        take(p1, 99)
        stamp('P5_pub')
        self.dump_stamps()
        for f in wqre: f()
        a(f's_lshl_b32 s31, s28, 15\ns_add_u32 s30, s31, {XF}\nv_add_u32 v{VX}, s30, v{V_L16}')
        a(f's_mov_b32 s25, 1\ns_add_u32 s26, s26, {LSTR}\ns_add_u32 s27, s27, 32768\ns_add_u32 {SJ}, {SJ}, 32768')
        c.wait(vm='st'); self.wsignal(SX, 128, FF)
        a(f's_branch {LM}')
        a(f'{lf}:')
        a(f'buffer_store_dwordx4 v[{PT}:{PT+3}], v{V_XROW}, s[16:19], s63 offen')
        stamp('P5_pub')
        self.dump_stamps()
        a('s_branch M_done')

    def run(self):
        a, c = self.a, self.c
        self.prep()
        self.prologue()
        for t in range(2):
            for i in range(4):
                a(f'v_lshlrev_b32 v{V_RES+8*t+2*i}, 16, v{56+4*t+i}')
                a(f'v_and_b32 v{V_RES+8*t+2*i+1}, 0xffff0000, v{56+4*t+i}')
        for b in (64, 72):
            for p in (0, 2): a(pk('add', b+p, b+p, b+4+p))
            a(pk('add', b, b, b+2))
            a(f'v_add_f32 v{b}, v{b}, v{b+1}')
            a(f'v_mov_b32 v{b+1}, v{b}\nv_permlane32_swap_b32 v{b}, v{b+1}\nv_add_f32 v{b+1}, v{b}, v{b+1}')
            if b == 72: a(f's_cmp_eq_u32 s20, 3\ns_cselect_b32 s30, 16, 0\nv_and_b32 v{b}, s30, v0\nv_cmp_eq_u32 vcc, 0, v{b}\nv_cndmask_b32 v{b+1}, 0, v{b+1}, vcc')
            x = b+1
            a(f'v_cvt_pk_bf16_f32 v{x+1}, v{x}, v{x}\nv_and_b32 v{x+2}, 0xffff0000, v{x+1}\nv_sub_f32 v{x+2}, v{x}, v{x+2}\nv_cvt_pk_bf16_f32 v{x+2}, v{x+2}, v{x+2}')
        a(f'v_lshlrev_b32 v50, 1, v50\ns_lshl_b32 s30, s32, 8\ns_add_u32 s30, s30, {T_CF}\nv_add_u32 v52, s30, v50\ns_lshl_b32 s30, s20, 8\ns_add_u32 s30, s30, {T_CF+768}\nv_add_u32 v53, s30, v50')
        a('ds_write_b64 v52, v[66:67]\nds_write_b64 v53, v[74:75]')
        a(f'v_accvgpr_write_b32 a{A_C1+8}, 0\nv_accvgpr_write_b32 a{A_C1+9}, 0')
        a('s_lshl_b32 s30, s20, 2\ns_lshl_b32 s36, 0x000f000f, s30\ns_mov_b32 s37, 0\ns_lshl_b32 s30, s23, 5\ns_lshl_b64 s[36:37], s[36:37], s30')
        a('s_waitcnt lgkmcnt(0)')
        a('s_cmp_lg_u64 s[14:15], 0\ns_cbranch_scc1 M_slow')
        self.body('fast')
        a('M_slow:')
        c.vm = []; c.lg = []
        self.body('slow')
        a('M_done:\ns_waitcnt vmcnt(0)')
        a('M_end:')

if __name__ == '__main__':
    a = Asm()
    a.launch('prep_kernel', 608, 256, lds=16384)
    a.launch('main_kernel', 256, 256, lds=163840)
    diag = len(sys.argv) > 2
    G(a, diag, eval(os.environ.get('OPTS', '{}'))).run()
    if diag: open(sys.argv[2], 'w').write(' '.join(STAMPS))
    out = sys.argv[1] if len(sys.argv) > 1 else 'interleave_layers__sliding_block__dense_activation_silu__prompt.s'
    a.write(out)
```

```python
import sys, struct, os
from asmfw import *
KB = 1024; MB = 1 << 20
FG = 0; FKV = 96*KB; FID = 160*KB; FZERO = 192*KB
WOC = 1*MB; W2C = WOC + 512*KB; W1C = W2C + 1792*KB; CS1 = W1C + 1792*KB; CSQ = CS1 + 128*KB; WQC = 6*MB
LB0 = 8*MB; LSTR = 4*MB
XF = 16*MB; XS = XF + 2*MB; OF = 19*MB; HF = 21*MB
DUMP = 200*MB
L_KV = 96*KB; SLOT = 4160; OFS = (0, 1024, 2048, 3104)
L_S0 = 88*KB; L_S1 = 122*KB; RSTR = 272; RW = 32*RSTR
L_TAB = 156*KB
T_AB = L_TAB; T_CF = L_TAB + 512
LOG2E = 1.4426950408889634
def f2u(x): return struct.unpack('<I', struct.pack('<f', x))[0]
MF = 'v_mfma_f32_32x32x16_bf16'

class Ctrs:
    def __init__(self, a): self.a = a; self.vm = []; self.lg = []
    def _n(self, q, tag):
        if tag is None or tag not in q: return None
        return len(q) - 1 - q[::-1].index(tag)
    def wait(self, vm=None, lg=None):
        parts = []
        i = self._n(self.vm, vm)
        if i is not None:
            parts.append(f'vmcnt({min(len(self.vm)-1-i, 63)})'); self.vm = self.vm[i+1:]
        i = self._n(self.lg, lg)
        if i is not None:
            parts.append(f'lgkmcnt({min(len(self.lg)-1-i, 15)})'); self.lg = self.lg[i+1:]
        if parts: self.a('s_waitcnt ' + ' '.join(parts))
    def vm0(self): self.a('s_waitcnt vmcnt(0)'); self.vm = []
    def lg0(self): self.a('s_waitcnt lgkmcnt(0)'); self.lg = []

def srd(a, d, base, size):
    a(f's_mov_b32 s{d}, s{base}\ns_mov_b32 s{d+1}, s{base+1}\ns_mov_b32 s{d+2}, {hex(size)}\ns_mov_b32 s{d+3}, 0x00020000')

V_L16=1; V_T4=2; V_T5=3; V_XROW=4; V_F32=5; V_W1A=6; V_STS=7; V_STL=8; V_ZERO=9; V_L4=10; V_E=11
V_RW=12; V_RR=13; V_H16=14; V_T3=15
V_RES=16; V_AM=32
V_KA=40; V_VA0=41; V_VA1=42; V_KDUP=43; V_TS=44; V_T0=45; V_T1=46; V_T2=47
S_R12=40; S_R11=48; S_P=56; S_M=64
A_CQ=224; A_C1=230; A_X=240
SX, SJ = 's0', 's38'
STAMPS = []
def xreg(i): return v(48+4*i, 4) if i < 28 else a_(A_X+4*(i-28), 4)
def pk(op, d, s0, s1): return f'v_pk_{op}_f32 v[{d}:{d+1}], v[{s0}:{s0+1}], v[{s1}:{s1+1}]'

IDS = '''
        s_and_b32 s30, s2, 7
        s_lshr_b32 s31, s2, 3
        s_and_b32 s22, s31, 15          ; j
        s_lshr_b32 s31, s31, 4
        s_lshl_b32 s21, s30, 1
        s_add_u32 s21, s21, s31         ; g
        s_lshr_b32 s23, s22, 3          ; half
        s_and_b32 s24, s22, 7           ; c
        s_lshl_b32 s28, s21, 2
        s_lshl_b32 s29, s23, 1
        s_add_u32 s29, s29, s28         ; tbh
        s_add_u32 s28, s28, s20         ; tbw
        s_mov_b32 s63, 32768
'''
PUBADDR = f'''
        v_and_b32 v50, 7, v0             ; tok8
        v_lshrrev_b32 v51, 3, v0         ; fg
        s_lshl_b32 s30, s20, 3
        v_add_u32 v52, s30, v50
        v_lshlrev_b32 v{V_XROW}, 10, v52
        v_lshl_add_u32 v{V_XROW}, v51, 4, v{V_XROW}
        s_lshl_b32 s30, s29, 15
        s_lshl_b32 s31, s24, 7
        s_add_u32 s30, s30, s31
        v_add_u32 v{V_XROW}, s30, v{V_XROW}
        v_lshrrev_b32 v53, 1, v51
        v_lshlrev_b32 v{V_F32}, 10, v53
        v_and_b32 v53, 1, v51
        v_lshl_add_u32 v53, v53, 5, v52
        v_lshl_add_u32 v{V_F32}, v53, 4, v{V_F32}
        s_lshl_b32 s30, s29, 15
        s_lshl_b32 s31, s24, 12
        s_add_u32 s30, s30, s31
        s_add_u32 s30, s30, {XF}
        v_add_u32 v{V_F32}, s30, v{V_F32}
        v_bfe_u32 v53, v0, 4, 1
        v_lshlrev_b32 v53, 2, v53
        v_lshl_add_u32 v{V_STS}, v52, 3, v53
        s_lshl_b32 s30, s29, 11
        s_lshl_b32 s31, s24, 8
        s_add_u32 s30, s30, s31
        s_add_u32 s30, s30, {XS}
        v_add_u32 v{V_STS}, s30, v{V_STS}
'''

class G:
    def __init__(self, a, diag, opts):
        self.a = a; self.diag = diag; self.o = opts; self.c = Ctrs(a)
    def stamp(self, name):
        if not self.diag: return
        if name not in STAMPS: STAMPS.append(name)
        i = STAMPS.index(name); assert i < 30
        self.a(f's_memtime s[98:99]\ns_waitcnt lgkmcnt(0)\nv_writelane_b32 v{V_TS}, s98, {i}')
        self.c.lg = []
    def rstamp(self, i):
        if self.diag: self.a(f's_memrealtime s[98:99]\ns_waitcnt lgkmcnt(0)\nv_writelane_b32 v{V_TS}, s98, {i}')
    def dump_stamps(self):
        if not self.diag: return
        a = self.a; self.rstamp(31)
        a(f's_lshl_b32 s30, s2, 2\ns_add_u32 s30, s30, s20\ns_lshl_b32 s30, s30, 1\ns_add_u32 s30, s30, s25\ns_lshl_b32 s30, s30, 7\ns_add_u32 s30, s30, {DUMP}')
        a(f's_mov_b64 exec, 0xffffffff\nbuffer_store_dword v{V_TS}, v{V_L4}, s[4:7], s30 offen\ns_mov_b64 exec, -1')
        self.c.vm.append('dump')
    def emit(self, x):
        a, c = self.a, self.c
        if isinstance(x, str): a(x)
        elif callable(x): x()
        elif x[0] == 'ds': a(x[1]); c.lg.append(x[2])
        elif x[0] == 'vm': a(x[1]); c.vm.append(x[2])
        elif x[0] == 'lw': c.wait(lg=x[1])
        elif x[0] == 'vw': c.wait(vm=x[1])
    def take(self, L, n):
        for _ in range(n):
            if L: self.emit(L.pop(0))
    def layer0(self, fn):
        l = self.a.label('Z'); q = (list(self.c.vm), list(self.c.lg))
        self.a(f's_cmp_lg_u32 s25, 0\ns_cbranch_scc1 {l}')
        fn()
        self.a(f'{l}:')
        self.c.vm, self.c.lg = q
    def publish(self, t, src, T, dflag, usepk=True, cvt=True):
        L = []
        if cvt:
            for i in range(4): L.append(f'v_cvt_pk_bf16_f32 v{T+i}, v{src+2*i}, v{src+2*i+1}')
        L.append(('vm', f'buffer_store_dwordx4 v[{T}:{T+3}], v{V_F32}, s[4:7], {"s63" if t else "0"} offen {dflag}', 'st'))
        S, Q = T+4, T+6
        if usepk:
            L.append(pk('add', S, src, src+2)); L.append(pk('mul', Q, src, src))
            for i in (2, 4, 6):
                if i > 2: L.append(pk('add', S, S, src+i))
                L.append(f'v_pk_fma_f32 v[{Q}:{Q+1}], v[{src+i}:{src+i+1}], v[{src+i}:{src+i+1}], v[{Q}:{Q+1}]')
            L.append(f'v_add_f32 v{S}, v{S}, v{S+1}'); L.append(f'v_add_f32 v{Q}, v{Q}, v{Q+1}')
        else:
            L.append(f'v_add_f32 v{S}, v{src}, v{src+1}'); L.append(f'v_mul_f32 v{Q}, v{src}, v{src}')
            for i in range(1, 8):
                if i > 1: L.append(f'v_add_f32 v{S}, v{S}, v{src+i}')
                L.append(f'v_fmac_f32 v{Q}, v{src+i}, v{src+i}')
        L += [f'v_permlane16_swap_b32 v{S}, v{Q}', f'v_add_f32 v{S}, v{S}, v{Q}',
              f'v_add_f32_dpp v{S}, v{S}, v{S} row_ror:8 row_mask:0xf bank_mask:0xf', f'v_mov_b32 v{Q}, v{S}',
              f'v_permlane32_swap_b32 v{S}, v{Q}', f'v_add_f32 v{S}, v{S}, v{Q}']
        L.append(('vm', f's_mov_b64 exec, 0xff00ff\nbuffer_store_dword v{S}, v{V_STS}, s[4:7], 0 offen offset:{t*2048} {dflag}\ns_mov_b64 exec, -1', 'st'))
        return L
    def wsignal(self, sreg, off, fflag):
        self.a(f's_mov_b64 exec, 1\nbuffer_store_dword v{V_E}, v{V_ZERO}, s[4:7], {sreg} offen offset:{off} {fflag}\ns_mov_b64 exec, -1'); self.c.vm.append('fl')
    def poll(self, sreg, off, mask, hook=None):
        a = self.a; ld = a.label('S'); lp = a.label('S')
        def one():
            a(f'buffer_load_dword v{V_T0}, v{V_L4}, s[4:7], {sreg} offen offset:{off} sc1')
            a('s_waitcnt vmcnt(0)')
            a(f'v_cmp_ne_u32 vcc, v{V_E}, v{V_T0}')
        a(f's_mov_b64 exec, {mask}')
        if hook:
            one(); hook()
            a(f's_cbranch_vccz {ld}')
            a(f's_mov_b64 exec, {mask}')
        a(f'{lp}:')
        one()
        a(f's_cbranch_vccz {ld}')
        a(f's_add_u32 s39, s39, 1\ns_cmp_lt_u32 s39, 200000\ns_cbranch_scc1 {lp}')
        a(f'{ld}:')
        a('s_mov_b64 exec, -1')
        self.c.vm = []
    def img_items(self, src, tile, lo, hi, rot=False):
        a, c = self.a, self.c
        n = (hi - lo) // 4; it = []
        for i in range(n):
            def f(i=i):
                if i == 0:
                    a(f's_mul_i32 s100, s20, {n*1024}\ns_add_u32 m0, s100, {lo*1024}')
                    a(f's_mul_i32 s101, s22, {tile}\ns_add_u32 s101, s101, s100\ns_add_u32 s101, s101, {src+lo*1024}')
                elif i % 4 == 0: a('s_add_u32 m0, m0, 4096\ns_add_u32 s101, s101, 4096')
                a(f'buffer_load_dwordx4 v{V_L16}, s[4:7], s101 offen offset:{(i%4)*1024} lds'); c.vm.append('pf')
            it.append(f)
        return it

    def prep(self):
        a = self.a
        a.kernel('prep_kernel', vgpr=128, sgpr=100)
        a('''
        s_load_dwordx2 s[96:97], s[0:1], 64
        s_load_dwordx4 s[64:67], s[0:1], 0
        s_load_dwordx2 s[68:69], s[0:1], 16
        s_load_dwordx4 s[72:75], s[0:1], 32
        s_cmp_ge_u32 s2, 608
        s_cbranch_scc1 P_end
        v_lshrrev_b32 v1, 6, v0
        v_readfirstlane_b32 s20, v1
        v_mov_b32 v48, v0
        v_and_b32 v0, 63, v0
        s_cmp_ge_u32 s2, 256
        s_cbranch_scc1 P_w
        ''')
        if self.o.get('cpf', 1):
            a('''s_cmp_lg_u32 s20, 3
            s_cbranch_scc1 P_nopf
            s_getpc_b64 s[40:41]
            P_pc:
            s_add_u32 s40, s40, main_kernel-P_pc
            s_addc_u32 s41, s41, 0
            s_lshr_b32 s30, s2, 3
            s_lshl_b32 s30, s30, 11
            s_cmp_ge_u32 s30, M_slow-main_kernel
            s_cbranch_scc1 P_nopf
            v_lshlrev_b32 v80, 4, v0
            v_add_u32 v80, s30, v80
            global_load_dwordx4 v[84:87], v80, s[40:41]
            global_load_dwordx4 v[88:91], v80, s[40:41] offset:1024
            P_nopf:''')
        a(IDS); a(PUBADDR)
        a('s_waitcnt lgkmcnt(0)')
        srd(a, 8, 64, 2*MB); srd(a, 4, 96, 0x10000000)
        a(f'''
        buffer_load_dwordx4 v[56:59], v{V_XROW}, s[8:11], 0 offen
        buffer_load_dwordx4 v[64:67], v{V_XROW}, s[8:11], s63 offen
        v_mov_b32 v72, 0
        v_lshlrev_b32 v48, 2, v48
        s_mul_i32 s30, s2, 768
        s_waitcnt vmcnt(0)
        ''')
        for t in range(2):
            for i in range(4):
                a(f'v_lshlrev_b32 v{V_RES+8*t+2*i}, 16, v{56+8*t+i}')
                a(f'v_and_b32 v{V_RES+8*t+2*i+1}, 0xffff0000, v{56+8*t+i}')
        for x in self.publish(0, V_RES, 56, '', cvt=False) + self.publish(1, V_RES+8, 64, '', cvt=False): self.emit(x)
        a('s_cmp_eq_u32 s20, 3\ns_cbranch_scc1 P_done\nbuffer_store_dword v72, v48, s[4:7], s30 offen')
        a('s_branch P_done')
        a('P_w:')
        a(f'''
        s_sub_u32 s33, s2, 256
        s_lshl_b32 s33, s33, 2
        s_add_u32 s33, s33, s20          ; item
        v_lshlrev_b32 v{V_L16}, 4, v0
        v_lshlrev_b32 v{V_L4}, 2, v0
        v_bfe_u32 v6, v0, 2, 2
        v_and_b32 v7, 3, v0
        s_lshl_b32 s23, s20, 12
        s_waitcnt lgkmcnt(0)
        ''')
        srd(a, 4, 96, 0x10000000)
        a('s_cmp_ge_u32 s33, 384\ns_cbranch_scc1 P_n1')
        srd(a, 8, 66, 512*3072)
        a('s_mul_i32 s34, s33, 2731\ns_lshr_b32 s34, s34, 16\ns_mul_i32 s36, s34, 24\ns_sub_u32 s35, s33, s36\ns_mov_b32 s36, 3072\ns_mov_b32 s76, 2\ns_branch P_go')
        a('P_n1:\ns_cmp_ge_u32 s33, 832\ns_cbranch_scc1 P_n2')
        srd(a, 8, 72, 512*3584)
        a('s_sub_u32 s35, s33, 384\ns_mul_i32 s34, s35, 2341\ns_lshr_b32 s34, s34, 16\ns_mul_i32 s36, s34, 28\ns_sub_u32 s35, s35, s36\ns_mov_b32 s36, 3584\ns_mov_b32 s76, 1\ns_branch P_go')
        a('P_n2:\ns_cmp_ge_u32 s33, 960\ns_cbranch_scc1 P_n3')
        srd(a, 8, 68, 512*1024)
        a(f's_sub_u32 s34, s33, 832\ns_and_b32 s35, s34, 7\ns_lshr_b32 s34, s34, 3\ns_mul_i32 s77, s35, {64*KB}\ns_add_u32 s77, s77, {WOC}\ns_mov_b32 s76, 0\ns_mov_b32 s36, 1024\ns_branch P_go')
        a('P_n3:')
        srd(a, 8, 74, 1792*1024)
        a(f's_sub_u32 s34, s33, 960\ns_and_b32 s35, s34, 7\ns_lshr_b32 s34, s34, 3\ns_mul_i32 s77, s35, {224*KB}\ns_add_u32 s77, s77, {W2C}\ns_mov_b32 s76, 0\ns_mov_b32 s36, 1024')
        a('P_go:')
        a('v_lshrrev_b32 v12, 3, v0\nv_mul_lo_u32 v12, v12, s36\nv_and_b32 v13, 7, v0\nv_lshl_add_u32 v12, v13, 4, v12')
        a('s_mul_i32 s37, s34, s36\ns_lshl_b32 s37, s37, 5\ns_lshl_b32 s30, s35, 7\ns_add_u32 s37, s37, s30\ns_lshl_b32 s36, s36, 3')
        for i in range(4):
            a(f's_add_u32 m0, s23, {i*1024}')
            a('buffer_load_dwordx4 v12, s[8:11], s37 offen nt lds')
            if i < 3: a('s_add_u32 s37, s37, s36')
        for i in range(4): a(f'v_mov_b32 v{32+i}, 0x3f803f80')
        a('s_cmp_eq_u32 s76, 1\ns_cbranch_scc1 P_16')
        a('''
        s_cmp_eq_u32 s76, 2
        s_cselect_b32 s30, 3, 2
        s_lshr_b32 s31, 4096, s30
        v_lshrrev_b32 v14, 5, v0
        v_lshlrev_b32 v14, s30, v14
        v_add_u32 v14, v14, v6
        v_lshlrev_b32 v14, 7, v14
        v_bfe_u32 v15, v0, 4, 1
        v_lshl_add_u32 v14, v15, 5, v14
        v_lshl_add_u32 v14, v7, 3, v14
        v_add_u32 v14, s23, v14
        v_add_u32 v15, s31, v14
        s_waitcnt vmcnt(0)
        ''')
        for kbl in range(2):
            for ft in range(2):
                r = 16 + (kbl*2+ft)*4
                a(f'ds_read_b64_tr_b16 v[{r}:{r+1}], v14 offset:{kbl*2048+ft*64}')
                a(f'ds_read_b64_tr_b16 v[{r+2}:{r+3}], v15 offset:{kbl*2048+ft*64}')
        a('s_cmp_eq_u32 s76, 2\ns_cbranch_scc1 P_q')
        a('s_lshl_b32 s30, s34, 12\ns_add_u32 s77, s77, s30\ns_waitcnt lgkmcnt(0)')
        for i in range(4): a(f'buffer_store_dwordx4 v[{16+4*i}:{19+4*i}], v{V_L16}, s[4:7], s77 offen offset:{i*1024}')
        a('s_branch P_done')
        a('P_q:')
        a(f'''
        s_and_b32 s30, s35, 7
        s_mul_i32 s77, s30, {192*KB}
        s_lshr_b32 s30, s35, 3
        s_lshl_b32 s30, s30, 12
        s_add_u32 s77, s77, s30
        s_lshr_b32 s30, s34, 1
        s_mul_i32 s30, s30, 12288
        s_add_u32 s77, s77, s30
        s_and_b32 s30, s34, 1
        s_lshl_b32 s30, s30, 11
        s_add_u32 s77, s77, s30
        s_add_u32 s77, s77, {WQC}
        s_add_u32 s78, s77, {96*KB}
        s_waitcnt lgkmcnt(0)
        ''')
        for ft in range(2):
            a(f'{MF} v[{64+16*ft}:{79+16*ft}], v[32:35], v[{16+4*ft}:{19+4*ft}], 0')
        for ft in range(2):
            a(f'{MF} v[{64+16*ft}:{79+16*ft}], v[32:35], v[{24+4*ft}:{27+4*ft}], v[{64+16*ft}:{79+16*ft}]')
        for kbl in range(2):
            for ft in range(2):
                r = 16 + (kbl*2+ft)*4
                a(f'buffer_store_dwordx4 v[{r}:{r+3}], v{V_L16}, s[4:7], s{77+ft} offen offset:{kbl*1024}')
        a(f's_mul_i32 s30, s34, 6144\ns_lshl_b32 s31, s35, 8\ns_add_u32 s30, s30, s31\ns_add_u32 s30, s30, {CSQ}')
        a('s_mov_b32 exec_lo, 0\nv_mov_b32 v64, v80\ns_mov_b64 exec, -1')
        a(f'buffer_store_dword v64, v{V_L4}, s[4:7], s30 offen')
        a('s_branch P_done')
        a('P_16:')
        a('''
        v_lshrrev_b32 v14, 4, v0
        v_lshl_add_u32 v14, v14, 3, v6
        v_lshlrev_b32 v14, 7, v14
        v_lshl_add_u32 v14, v7, 3, v14
        v_add_u32 v14, s23, v14
        v_lshrrev_b32 v15, 5, v0
        v_mul_u32_u24 v15, 3584, v15
        v_and_b32 v13, 31, v0
        v_lshl_add_u32 v15, v13, 4, v15
        s_mul_i32 s78, s34, 7168
        s_waitcnt vmcnt(0)
        ''')
        for u in range(4):
            r = 16 + u*4
            a(f'ds_read_b64_tr_b16 v[{r}:{r+1}], v14 offset:{u*32}')
            a(f'ds_read_b64_tr_b16 v[{r+2}:{r+3}], v14 offset:{u*32+512}')
        a('s_waitcnt lgkmcnt(0)')
        for u in range(4): a(f'v_mfma_f32_16x16x32_bf16 v[{40+4*u}:{43+4*u}], v[32:35], v[{16+4*u}:{19+4*u}], 0')
        for u in range(4):
            a(f'''s_lshl_b32 s30, s35, 2
            s_add_u32 s30, s30, {u}
            s_mul_i32 s31, s30, 9363
            s_lshr_b32 s31, s31, 16
            s_mul_i32 s31, s31, {112*1024-3584}
            s_lshl_b32 s30, s30, 9
            s_add_u32 s31, s31, s30
            s_add_u32 s31, s31, s78
            s_add_u32 s31, s31, {W1C}
            buffer_store_dwordx4 v[{16+4*u}:{19+4*u}], v15, s[4:7], s31 offen''')
        a(f's_lshl_b32 s30, s35, 8\ns_add_u32 s31, s30, s78\ns_add_u32 s31, s31, {CS1}')
        a('s_mov_b64 exec, 0xffff0000\nv_mov_b32 v40, v44\ns_mov_b32 exec_lo, 0\ns_mov_b32 exec_hi, 0xffff\nv_mov_b32 v40, v48\ns_mov_b32 exec_hi, 0xffff0000\nv_mov_b32 v40, v52\ns_mov_b64 exec, -1')
        a(f'buffer_store_dword v40, v{V_L4}, s[4:7], s31 offen')
        a('P_done:\nP_end:')
        self.c.vm = []; self.c.lg = []

    def prologue(self):
        a, c, o = self.a, self.c, self.o
        a.kernel('main_kernel', vgpr=512, sgpr=102, accum=256)
        a('''
        s_load_dwordx2 s[96:97], s[0:1], 64
        s_load_dwordx2 s[70:71], s[0:1], 48
        s_cmp_ge_u32 s2, 256
        s_cbranch_scc1 M_end
        v_lshrrev_b32 v1, 6, v0
        v_readfirstlane_b32 s20, v1
        v_and_b32 v0, 63, v0
        ''')
        a(IDS)
        a(f'''
        s_mov_b32 s25, 0
        s_lshl_b32 s27, s21, 11
        s_mov_b32 s39, 0
        s_mov_b32 s26, {LB0}
        v_lshlrev_b32 v{V_L16}, 4, v0
        v_lshlrev_b32 v{V_L4}, 2, v0
        v_mov_b32 v{V_ZERO}, 0
        v_mov_b32 v{V_E}, 1
        s_getreg_b32 s30, hwreg(HW_REG_XCC_ID)
        s_and_b32 s35, s30, 15
        s_add_u32 s35, s35, 1
        v_mov_b32 v54, s35
        s_lshl_b32 s33, s21, 7
        s_add_u32 s33, s33, {FID}
        s_lshl_b32 s31, s22, 2
        s_add_u32 s34, s33, s31
        ''')
        a(PUBADDR)
        a('s_waitcnt lgkmcnt(0)')
        srd(a, 4, 96, 0x10000000)
        lf = a.label('C')
        a(f's_cmp_lg_u32 s20, 3\ns_cbranch_scc1 {lf}')
        a(f's_mov_b64 exec, 1\nbuffer_store_dword v54, v{V_ZERO}, s[4:7], s34 offen sc1\ns_mov_b64 exec, -1')
        a(f'{lf}:')
        self.stamp('start'); self.rstamp(30)
        a(f'buffer_load_dwordx4 v[160:163], v{V_F32}, s[4:7], 0 offen\nbuffer_load_dwordx4 v[164:167], v{V_F32}, s[4:7], s63 offen')
        a(f'v_mul_u32_u24 v{V_RR}, {RSTR}, v52\nv_lshl_add_u32 v{V_RR}, v51, 5, v{V_RR}')
        a(f'v_and_b32 v184, 31, v0\nv_lshrrev_b32 v185, 5, v0\nv_lshlrev_b32 v186, 2, v184')
        a(f'v_mul_u32_u24 v187, {8*6144}, v185\nv_add_u32 v187, v187, v186\nv_mul_u32_u24 v188, {8*7168}, v185\nv_add_u32 v188, v188, v186')
        a(f's_min_u32 s32, s20, 2\ns_lshl_b32 s30, s32, 11\ns_lshl_b32 s31, s22, 7\ns_add_u32 s30, s30, s31\ns_add_u32 s30, s30, {CSQ}')
        a(f's_mul_i32 s31, s22, 448\ns_lshl_b32 s36, s20, 7\ns_add_u32 s31, s31, s36\ns_add_u32 s31, s31, {CS1}')
        for p in range(8):
            a(f'buffer_load_dword v{168+p}, v187, s[4:7], s30 offen\nbuffer_load_dword v{176+p}, v188, s[4:7], s31 offen')
            if p < 7: a('s_add_u32 s30, s30, 6144\ns_add_u32 s31, s31, 7168')
        c.vm = ['sm']
        a(f's_mul_i32 s100, s20, 24576\ns_mul_i32 s101, s22, {96*KB}\ns_add_u32 s101, s101, {WQC}')
        a('s_mul_i32 s30, s21, 43\ns_lshr_b32 s30, s30, 8\ns_mul_i32 s30, s30, 6\ns_sub_u32 s12, s21, s30')
        def wqchunk():
            a('s_lshl_b32 s30, s12, 12\ns_add_u32 s30, s30, s100\ns_mov_b32 m0, s30\ns_add_u32 s30, s30, s101')
            for u in range(4):
                a(f'buffer_load_dwordx4 v{V_L16}, s[4:7], s30 offen offset:{u*1024} lds'); c.vm.append('wq')
            a('s_add_u32 s12, s12, 1\ns_cmp_eq_u32 s12, 6\ns_cselect_b32 s12, 0, s12')
        wqchunk(); wqchunk()
        srd(a, 16, 70, 2*MB)
        a(f"""
        s_lshl_b32 s30, s23, 8
        s_lshl_b32 s31, s24, 4
        s_add_u32 s30, s30, s31
        s_add_u32 s30, s30, s27
        s_lshl_b32 s31, s20, 2
        s_add_u32 s0, s30, s31
        s_lshl_b32 s30, s20, 6
        s_lshl_b32 s31, s22, 2
        s_add_u32 s30, s30, s31
        s_add_u32 s38, s30, s27
        v_lshlrev_b32 v{V_STL}, 10, v185
        v_lshl_add_u32 v{V_STL}, v184, 3, v{V_STL}
        s_lshl_b32 s30, s28, 11
        s_add_u32 s30, s30, {XS}
        v_add_u32 v{V_STL}, s30, v{V_STL}
        s_lshl_b32 s30, s20, 7
        s_add_u32 s30, s30, {T_AB}
        v_lshl_add_u32 v{V_H16}, v185, 4, s30
        v_mul_u32_u24 v{V_RW}, {RSTR}, v184
        v_lshl_add_u32 v{V_RW}, v185, 4, v{V_RW}
        s_mul_i32 s30, s20, {RW}
        s_add_u32 s30, s30, {L_S1}
        v_add_u32 v{V_RW}, s30, v{V_RW}
        v_add_u32 v{V_RR}, {L_S1}, v{V_RR}
        v_lshlrev_b32 v{V_KDUP}, 9, v185
        v_bfe_u32 v53, v0, 4, 1
        v_lshlrev_b32 v{V_W1A}, 9, v53
        v_lshl_add_u32 v{V_W1A}, v185, 8, v{V_W1A}
        v_and_b32 v53, 15, v0
        v_lshl_add_u32 v{V_W1A}, v53, 4, v{V_W1A}
        s_mul_i32 s30, s20, {SLOT}
        s_add_u32 s30, s30, {L_KV}
        v_add_u32 v{V_KA}, s30, v{V_L16}
        v_add_u32 v{V_VA0}, 2048, v{V_KA}
        v_add_u32 v{V_VA1}, 2304, v{V_KA}
        s_add_u32 s31, s30, 3072
        v_mov_b32 v55, s31
        v_and_b32 v53, 16, v0
        v_cmp_eq_u32 vcc, 0, v53
        v_cndmask_b32 v{V_VA0}, v55, v{V_VA0}, vcc
        v_cndmask_b32 v{V_VA1}, v55, v{V_VA1}, vcc
        """)
        wqchunk()
        for i in range(8):
            a(f's_xor_b32 s30, s24, {i}\ns_lshl_b32 s{S_R12+i}, s30, 12\ns_lshl_b32 s{S_R11+i}, s30, 11')
        for i in range(4):
            a(f's_add_u32 s30, s24, {i}\ns_and_b32 s30, s30, 3\ns_mul_i32 s{S_P+i}, s30, 7168')
        a(f's_mul_i32 s13, s24, {112*2048}\ns_mul_i32 s30, s20, {28*2048}\ns_add_u32 s13, s13, s30\ns_add_u32 s13, s13, {W2C}')
        for i in range(4): a(f's_lshl_b32 s{8+i}, s{S_P+i}, 1\ns_add_u32 s{8+i}, s{8+i}, s13')
        a('v_lshlrev_b32 v53, 2, v185\nv_sub_u32 v53, v184, v53')
        for r in range(16):
            a(f'v_cmp_le_i32 s[{S_M+2*r}:{S_M+2*r+1}], {(r & 3) + 8*(r >> 2)}, v53')
        wqchunk()
        a('v_mov_b32 v54, 0xffff\nv_mov_b32 v55, 0xffff0000')
        for i in range(8):
            a(f'v_cndmask_b32 v52, 0, v54, s[{S_M+4*i}:{S_M+4*i+1}]')
            a(f'v_cndmask_b32 v{V_AM+i}, 0, v55, s[{S_M+4*i+2}:{S_M+4*i+3}]')
            a(f'v_or_b32 v{V_AM+i}, v52, v{V_AM+i}')
        c.wait(vm='sm')
        for t in range(2):
            for i in range(4):
                a(f'v_lshlrev_b32 v{V_RES+8*t+2*i}, 16, v{160+4*t+i}')
                a(f'v_and_b32 v{V_RES+8*t+2*i+1}, 0xffff0000, v{160+4*t+i}')
        wqchunk()
        for b in (168, 176):
            for p in (0, 2): a(pk('add', b+p, b+p, b+4+p))
            a(pk('add', b, b, b+2))
            a(f'v_add_f32 v{b}, v{b}, v{b+1}')
            a(f'v_mov_b32 v{b+1}, v{b}\nv_permlane32_swap_b32 v{b}, v{b+1}\nv_add_f32 v{b+1}, v{b}, v{b+1}')
            if b == 176: a(f's_cmp_eq_u32 s20, 3\ns_cselect_b32 s30, 16, 0\nv_and_b32 v{b}, s30, v0\nv_cmp_eq_u32 vcc, 0, v{b}\nv_cndmask_b32 v{b+1}, 0, v{b+1}, vcc')
            x = b+1
            a(f'v_cvt_pk_bf16_f32 v{x+1}, v{x}, v{x}\nv_and_b32 v{x+2}, 0xffff0000, v{x+1}\nv_sub_f32 v{x+2}, v{x}, v{x+2}\nv_cvt_pk_bf16_f32 v{x+2}, v{x+2}, v{x+2}')
        a(f'v_lshlrev_b32 v186, 1, v186\ns_lshl_b32 s30, s32, 8\ns_add_u32 s30, s30, {T_CF}\nv_add_u32 v52, s30, v186\ns_lshl_b32 s30, s20, 8\ns_add_u32 s30, s30, {T_CF+768}\nv_add_u32 v53, s30, v186')
        a('ds_write_b64 v52, v[170:171]\nds_write_b64 v53, v[178:179]')
        a(f'v_accvgpr_write_b32 a{A_C1+8}, 0\nv_accvgpr_write_b32 a{A_C1+9}, 0')
        wqchunk()
        a('s_lshl_b32 s30, s20, 2\ns_lshl_b32 s36, 0x000f000f, s30\ns_mov_b32 s37, 0\ns_lshl_b32 s30, s23, 5\ns_lshl_b64 s[36:37], s[36:37], s30')
        a('s_lshl_b32 s30, s23, 5\ns_lshl_b32 s31, s20, 3\ns_add_u32 s30, s30, s31\ns_mov_b32 s60, 0xff\ns_mov_b32 s61, 0\ns_lshl_b64 s[60:61], s[60:61], s30')
        a(f's_lshl_b32 s31, s28, 15\ns_add_u32 s30, s31, {XF}\nv_add_u32 v{V_T3}, s30, v{V_L16}')
        a('s_lshl_b32 s30, s20, 7\ns_add_u32 s34, s27, s30')
        a(f'buffer_load_dword v184, v{V_L4}, s[4:7], s33 offen sc1'); c.vm.append('id')
        a('s_waitcnt lgkmcnt(0)')
        self.x_first()
        ld = a.label('S'); lp = a.label('S')
        c.wait(vm='id')
        a('s_mov_b64 exec, 0xffff')
        a(f'v_cmp_eq_u32 vcc, 0, v184\ns_cbranch_vccz {ld}')
        a(f'{lp}:')
        a(f'buffer_load_dword v184, v{V_L4}, s[4:7], s33 offen sc1')
        a('s_waitcnt vmcnt(0)')
        a('v_cmp_eq_u32 vcc, 0, v184')
        a(f's_cbranch_vccz {ld}')
        a(f's_add_u32 s39, s39, 1\ns_cmp_lt_u32 s39, 200000\ns_cbranch_scc1 {lp}')
        a(f'{ld}:')
        a('v_cmp_ne_u32 vcc, s35, v184')
        a('s_mov_b64 exec, -1')
        self.stamp('wq_arrived')
        a('s_cbranch_vccnz M_slow')
    def xload(self, i):
        self.a(f'buffer_load_dwordx4 {xreg(i)}, v{V_T3}, s[4:7], s{S_R12+i//4} offen offset:{(i%4)*1024} sc1'); self.c.vm.append(('x', i))
    def x_first(self):
        ST = 240
        for i in range(4): self.xload(i)
        for i in range(4):
            self.a(f'buffer_load_dwordx2 v[{ST+2*i}:{ST+2*i+1}], v{V_STL}, s[4:7], 0 offen offset:{i*256} sc1'); self.c.vm.append('stat')
        for i in range(4, self.o.get('npre', 10)): self.xload(i)

    def body(self, mode, L):
        a, c, o = self.a, self.c, self.o
        emit, take, stamp = self.emit, self.take, self.stamp
        FF = '' if mode == 'fast' else 'sc1'
        DF = '' if (mode == 'fast' and L in o.get('plainoh', ())) else 'sc1'
        DX = '' if (mode == 'fast' and L in o.get('plainx', (0,1))) else 'sc1'
        OF_ = o.get('outflag', '')
        def only0(fn):
            if L == 0: fn()
            elif L is None: self.layer0(fn)
        VX = V_T3
        if L is None:
            a('s_branch M_first_slow\nM_layer_slow:')
        if L != 0:
            self.poll('s34', 0, '0xffffffff')
            self.x_first()
        if L is None: a('M_first_slow:')
        stamp('P1_start')
        ST = 240; MB_ = 248; RA = 252; RA2 = 254
        xload = self.xload
        def stats_code(scale2):
            Ls = [('vw', 'stat')]
            for k in range(2): Ls += [f'v_add_f32 v{ST+k}, v{ST+k}, v{ST+2+k}', f'v_add_f32 v{ST+4+k}, v{ST+4+k}, v{ST+6+k}']
            for k in range(2): Ls += [f'v_add_f32 v{ST+k}, v{ST+k}, v{ST+4+k}']
            for k in range(2): Ls += [f'v_mov_b32 v{ST+2+k}, v{ST+k}']
            Ls += [f'v_mov_b32 v{MB_+2}, 0']
            for k in range(2): Ls += [f'v_permlane32_swap_b32 v{ST+k}, v{ST+2+k}']
            for k in range(2): Ls += [f'v_add_f32 v{ST+k}, v{ST+k}, v{ST+2+k}']
            S, Q = ST, ST+1
            Ls += [f'v_mul_f32 v{S}, 0xbb000000, v{S}', f'v_mul_f32 v{Q}, 0x3b000000, v{Q}', f'v_fma_f32 v{Q}, -v{S}, v{S}, v{Q}',
                  f'v_max_f32 v{Q}, 0, v{Q}', f'v_add_f32 v{Q}, {hex(f2u(1e-5))}, v{Q}', f'v_rsq_f32 v{RA}, v{Q}',
                  f'v_cvt_pk_bf16_f32 v{ST+2}, v{S}, v{S}', f'v_and_b32 v{ST+3}, 0xffff0000, v{ST+2}', f'v_sub_f32 v{ST+3}, v{S}, v{ST+3}',
                  f'v_cmp_gt_u32 vcc, 32, v0', f'v_cvt_pk_bf16_f32 v{ST+2}, v{S}, v{ST+3}', f'v_mov_b32 v{MB_+3}, 0', f'v_mov_b32 v{RA+1}, v{RA}',
                  f'v_cndmask_b32 v{MB_}, 0, v{ST+2}, vcc', f'v_mov_b32 v{MB_+1}, v{MB_}',
                  f'v_mul_f32 v{RA2}, {hex(f2u(scale2))}, v{RA}', f'v_mov_b32 v{RA2+1}, v{RA2}']
            return Ls
        NPRE = o.get('npre', 10)
        TADR = (V_T1, V_T2)
        def w2a(p, kb, ft): return (p*7 + kb)*8 + ft*4
        def w2_item(p, kb, ft):
            def f():
                off = kb*2048 + ft*1024
                if off % 4096 == 0 and off: a(f's_add_u32 s12, s{8+p}, {off}')
                a(f'buffer_load_dwordx4 {a_(w2a(p,kb,ft),4)}, v{V_L16}, s[4:7], {"s12" if off >= 4096 else f"s{8+p}"} offen offset:{off%4096}'); c.vm.append('w2')
            return f
        w2all = [w2_item(p, kb, ft) for p in range(4) for kb in range(7) for ft in range(2)]
        w2 = w2all if L == 0 else []
        WB = 160; ACC = 192
        AQ, AK, AV = ACC, ACC+16, ACC+32
        CT = AQ + 8
        a(f"""
        v_lshrrev_b32 v{CT}, 1, v0
        v_mul_u32_u24 v{CT+1}, {SLOT}, v{CT}
        v_and_b32 v{CT+2}, 1, v0
        v_mul_u32_u24 v{CT+2}, 1056, v{CT+2}
        v_add_u32 v{CT+1}, v{CT+1}, v{CT+2}
        v_add_u32 v{CT+1}, {L_KV+3072}, v{CT+1}
        s_lshl_b32 s30, s21, 2
        v_add_u32 v{CT}, s30, v{CT}
        v_mov_b32 v{CT+2}, 0x3f803f80
        v_cmp_le_u32 vcc, 8, v{CT}
        v_cndmask_b32 v{CT+4}, 0, v{CT+2}, vcc
        v_mov_b32 v{CT+5}, v{CT+4}
        v_mov_b32 v{CT+6}, v{CT+4}
        v_mov_b32 v{CT+7}, v{CT+4}
        s_lshl_b32 s30, s22, 18
        s_lshl_b32 s31, s28, 12
        s_add_u32 s30, s30, s31
        s_add_u32 s96, s30, s26
        s_lshl_b32 s31, s22, 7
        s_add_u32 s30, s27, s31
        s_add_u32 s35, s30, {FKV}
        """)
        if L != 1: a('s_barrier')
        a(f's_mov_b64 exec, 0xffffff\nds_write_b128 v{CT+1}, v[{CT+4}:{CT+7}]\ns_mov_b64 exec, -1'); c.lg.append('ones')
        wn = [0]
        def wread(i, seg):
            r = WB + 4*(wn[0] % 8); wn[0] += 1
            a(f'ds_read_b128 {v(r,4)}, v{TADR[(i//4)%2]} offset:{seg*4096 + (i % 4)*1024}'); c.lg.append(('w', i, seg))
            return v(r, 4)
        def wadr(i): a(f'v_mad_u32_u24 v{TADR[(i//4)%2]}, s{S_R12+i//4}, 3, v{V_L16}')
        W = {}
        wadr(0)
        for i in range(3):
            for seg in (1, 2): W[i, seg] = wread(i, seg)
        def cf_get():
            a(f'v_and_b32 v{AQ}, 31, v0\nv_lshlrev_b32 v{AQ}, 3, v{AQ}\nv_add_u32 v{AQ}, {T_CF}, v{AQ}')
            for tl in range(7): a(f'ds_read_b64 a[{A_CQ+2*tl}:{A_CQ+2*tl+1}], v{AQ} offset:{tl*256}')
            a('s_waitcnt lgkmcnt(0)')
        only0(cf_get)
        sc = stats_code(0.25*LOG2E)
        for i in range(32):
            c.wait(vm=('x', i), lg=('w', i, 2))
            a(f'{MF} {v(AK,16)}, {W[i,1]}, {xreg(i)}, {"0" if i == 0 else v(AK,16)}')
            if i + 3 < 32:
                if (i+3) % 4 == 0: wadr(i+3)
                W[i+3, 1] = wread(i+3, 1)
            if i + NPRE < 32: xload(i + NPRE)
            a(f'{MF} {v(AV,16)}, {xreg(i)}, {W[i,2]}, {"0" if i == 0 else v(AV,16)}')
            if i + 3 < 32: W[i+3, 2] = wread(i+3, 2)
            if i >= 4: take(sc, 2)
            if i == 20:
                a(f'v_and_b32 v{ST}, 124, v{V_L4}\ns_lshl_b32 s30, s20, 7\ns_add_u32 s30, s30, {T_AB}\nv_add_u32 v{ST}, s30, v{ST}')
                a(f'ds_write_b32 v{ST}, v{RA}'); c.lg.append('tab')
            if i == 22:
                for q in range(2): a(f'ds_read_b128 {v(ST+4*q,4)}, v{V_H16} offset:{q*32}'); c.lg.append('ta0')
                for q in range(2): a(f'ds_read_b128 {v(AQ+4*q,4)}, v{V_H16} offset:{64+q*32}'); c.lg.append('ta0')
            if i == 21:
                a(f'{MF} {v(AK,16)}, {a_(A_CQ+2,4)}, {v(MB_,4)}, {v(AK,16)}')
                a(f'{MF} {v(AV,16)}, {v(MB_,4)}, {a_(A_CQ+4,4)}, {v(AV,16)}')
            if i == 29: wadr(0)
        assert not sc
        for i in range(4): W[i, 0] = wread(i, 0)
        wadr(4)
        for i in range(4, 6): W[i, 0] = wread(i, 0)
        stamp('P1_kv')
        for r in range(0, 16, 2): a(pk('mul', AK+r, RA, AK+r))
        for i in range(8): a(f'v_cvt_pk_bf16_f32 v{AK+i}, v{AK+2*i}, v{AK+2*i+1}')
        for i in range(2): emit(('vm', f'buffer_store_dwordx4 {v(AK+4*i,4)}, v{V_L16}, s[4:7], s96 offen offset:{i*1024} sc1', 'st'))
        for r in range(0, 8, 2): a(pk('mul', AV+r, ST+r, AV+r))
        for r in range(0, 8, 2): a(pk('mul', AV+8+r, AQ+r, AV+8+r))
        for i in range(8): a(f'v_cvt_pk_bf16_f32 v{AK+8+i}, v{AV+2*i}, v{AV+2*i+1}')
        for i in (2, 3): emit(('vm', f'buffer_store_dwordx4 {v(AK+4*i,4)}, v{V_L16}, s[4:7], s96 offen offset:{i*1024} sc1', 'st'))
        epi = [('ds', f'ds_write_b128 v{V_KA}, {v(AK+4*i,4)} offset:{8*SLOT+OFS[i]}', 'kvw') for i in range(4)]
        epi += ['s_lshl_b32 s33, s20, 2\ns_add_u32 s33, s33, s35']
        QSIG = o.get('qsig', 18)
        a(f'{MF} {v(AQ,16)}, {a_(A_CQ,4)}, {v(MB_,4)}, 0')
        for i in range(32):
            if i % 2 == 0: c.wait(lg=('w', i+1, 0))
            a(f'{MF} {v(AQ,16)}, {W[i,0]}, {xreg(i)}, {v(AQ,16)}')
            if i + 6 < 32:
                if (i+6) % 4 == 0: wadr(i+6)
                W[i+6, 0] = wread(i+6, 0)
            take(epi, 1)
            if i % 2 == 0 and i < 2*o.get('w2q', 10): take(w2, 1)
            if i == QSIG:
                c.wait(vm='st'); self.wsignal('s33', 0, 'sc1')
            if i == QSIG + 2 and DF == '':
                a(f's_lshl_b32 s30, s28, 15\ns_lshl_b32 s31, s22, 11\ns_add_u32 s30, s30, s31\ns_add_u32 s30, s30, {OF}\nv_lshlrev_b32 v{V_T5}, 7, v0')
                a(f's_mov_b64 exec, 0xffff\nbuffer_load_dword v{V_T4}, v{V_T5}, s[4:7], s30 offen sc1\ns_mov_b64 exec, -1')
            if i == 24:
                a('s_lshr_b32 s30, s20, 1\ns_sub_u32 s30, 2, s30\ns_min_u32 s31, s30, s21\ns_lshl_b32 s32, s31, 11\ns_sub_u32 s35, s35, s32')
            if i == 26:
                a('s_and_b32 s32, s20, 1\ns_lshl_b32 s32, s32, 1\ns_lshl_b32 s32, 3, s32\ns_cmp_eq_u32 s30, s31\ns_cselect_b32 s32, s32, 1\ns_mov_b32 s33, 0')
            if i == 28:
                a(f's_lshl_b32 s100, s22, 18\ns_add_u32 s100, s100, s26\ns_mul_i32 s101, s20, {2*SLOT}\ns_add_u32 s101, s101, {L_KV}')
        QP = 48
        stamp('P1_epi')
        ldn = a.label('S'); lpn = a.label('S')
        a('s_mov_b64 exec, s[32:33]')
        a(f'buffer_load_dword v{V_T0}, v{V_L4}, s[4:7], s35 offen sc1')
        a('s_mov_b64 exec, -1')
        for r in range(0, 16, 2): a(pk('mul', AQ+r, RA2, AQ+r))
        for i in range(8): a(f'v_cvt_pk_bf16_f32 v{QP+i}, v{AQ+2*i}, v{AQ+2*i+1}')
        a('s_mov_b64 exec, s[32:33]')
        a(f'{lpn}:\ns_waitcnt vmcnt(0)\nv_cmp_ne_u32 vcc, v{V_E}, v{V_T0}\ns_cbranch_vccz {ldn}')
        a(f'buffer_load_dword v{V_T0}, v{V_L4}, s[4:7], s35 offen sc1')
        a(f's_add_u32 s39, s39, 1\ns_cmp_lt_u32 s39, 200000\ns_cbranch_scc1 {lpn}')
        a(f'{ldn}:\ns_mov_b64 exec, -1')
        stamp('kv_sync')
        lv = a.label('K'); ld = a.label('K')
        order = [(sl, i) for i in (0, 1, 2, 3) for sl in range(2)]
        a(f's_cmp_eq_u32 s30, s31\ns_cbranch_scc1 {lv}')
        a(f'v_mov_b32 v{V_T2}, 0x7ff00000')
        for sl, i in order:
            a(f's_add_u32 m0, s101, {sl*SLOT+OFS[i]-(i*1024 if i < 2 else 0)}')
            if i < 2: a(f'buffer_load_dwordx4 v{V_KDUP}, s[4:7], s100 offen offset:{i*1024} sc1 lds')
            else: a(f'buffer_load_dwordx4 v{V_T2}, s[4:7], 0 offen sc1 lds')
        a(f's_branch {ld}')
        a(f'{lv}:')
        a('s_lshl_b32 s31, s21, 2\ns_lshl_b32 s32, s20, 1\ns_add_u32 s31, s31, s32\ns_sub_u32 s31, s31, 8\ns_lshl_b32 s31, s31, 12\ns_add_u32 s100, s100, s31\ns_add_u32 s33, s100, 4096')
        for sl, i in order:
            a(f's_add_u32 m0, s101, {sl*SLOT+OFS[i]-i*1024}')
            a(f'buffer_load_dwordx4 v{V_L16}, s[4:7], {("s100","s33")[sl]} offen offset:{i*1024} sc1 lds')
        a(f'{ld}:')
        c.vm = ['k0', 'k0', 'k1', 'k1', 'vv', 'vv', 'vv', 'vv']
        a(f's_lshl_b32 s30, s28, 15\ns_lshl_b32 s31, s22, 11\ns_add_u32 s30, s30, s31\ns_add_u32 s96, s30, {OF}')
        KF = 56; SBUF = (80, 96); SM = 112; NEG = 128; PB = 144; VF = 160; OA = 176; WO_ = 192
        kslot = [v(KF+4*i, 4) for i in range(6)] + [a_(A_X+4*i, 4) for i in range(4)]
        woo_regs = [112, 116, 120, 124, 56, 60, 64, 68, 72, 76, 80, 84, 88, 92, 128, 132]
        def wo_reg(k, ft): return WO_ + (k//2)*8 + ft*4 if k % 2 == 0 else woo_regs[(k//2)*2 + ft]
        a(f's_lshl_b32 s14, s24, 16\ns_and_b32 s30, s20, 1\ns_lshl_b32 s30, s30, 15\ns_add_u32 s14, s14, s30\ns_add_u32 s14, s14, {WOC}')
        def wo_item(k, ft):
            def f():
                sr = ('s15', 's62')[k % 2]
                if ft == 0: a(f's_add_u32 {sr}, s14, {(k//2)*4096}')
                a(f'buffer_load_dwordx4 {v(wo_reg(k,ft),4)}, v{V_L16}, s[4:7], {sr} offen offset:{(k%2)*2048+ft*1024}'); c.vm.append('wo')
            return f
        woe = [wo_item(k, ft) for k in range(0, 16, 2) for ft in range(2)]
        woo = [wo_item(k, ft) for k in range(1, 16, 2) for ft in range(2)]
        take(woe, o.get('woe', 0))
        c.lg0()
        c.wait(vm='k0'); a('s_barrier')
        stamp('kv_dma')
        pf = self.img_items(W1C, 112*KB, 0, 96) + woe
        if DF == '':
            def htouch(part):
                def f():
                    if part == 0: a(f's_mul_i32 s13, s28, {112*1024}\ns_mul_i32 s31, s22, 7168\ns_add_u32 s13, s13, s31\ns_add_u32 s13, s13, {HF}')
                    a(f's_mov_b64 exec, 0x3fff\nbuffer_load_dword v{V_T0}, v{V_T5}, s[4:7], s13 offen sc1\ns_mov_b64 exec, -1\ns_add_u32 s13, s13, 1792'); c.vm.append('pf')
                return f
            ht = [htouch(p) for p in range(4)]
        else: ht = []
        MX = V_T0
        def pfi():
            if pf: pf.pop(0)()
        tail = []
        order9 = [0, 8, 1, 2, 3, 4, 5, 6, 7]
        KR = [{}, {}]
        def kread(hd, blk):
            sl = order9.index(blk)
            if hd == 1: sl = {0: 0, 8: 1, 1: 9, 2: 2, 3: 3, 4: 4, 5: 5, 6: 6, 7: 7}[blk]
            a(f'ds_read_b128 {kslot[sl]}, v{V_KA} offset:{blk*SLOT+hd*1024}'); c.lg.append(('k', hd, blk))
            KR[hd][blk] = kslot[sl]
        for hd in range(2):
            q = v(QP+4*hd, 4); VA = (V_VA0, V_VA1)[hd]; kr = KR[hd]
            bufs = {0: SBUF[0], 8: SM, 1: SBUF[1], 2: NEG, 3: PB, 4: SBUF[0], 5: SBUF[1], 6: NEG, 7: PB}
            def qk(b, dst, cc='0', wt=None):
                c.wait(lg=('k', hd, b if wt is None else wt)); a(f'{MF} {v(dst,16)}, {kr[b]}, {q}, {cc}')
            if hd == 0:
                for b in order9: kread(0, b)
                qk(0, bufs[0], wt=8); qk(8, bufs[8])
            qk(1, bufs[1], wt=4)
            qk(2, bufs[2])
            for r in range(16):
                a(f'v_cndmask_b32 v{SM+r}, v{SBUF[0]+r}, v{SM+r}, s[{S_M+2*r}:{S_M+2*r+1}]')
                if r == 7: qk(3, bufs[3])
            a(f'v_max_f32 v{MX}, v{SM}, v{SM+1}')
            qk(4, bufs[4])
            take(tail, 99)
            for i in range(1, 8): a(f'v_max3_f32 v{MX}, v{SM+2*i}, v{SM+2*i+1}, v{MX}')
            for blk in range(1, 8):
                b = bufs[blk]
                for i in range(8): a(f'v_max3_f32 v{MX}, v{b+2*i}, v{b+2*i+1}, v{MX}')
                if blk + 4 <= 7: qk(blk+4, bufs[blk+4], wt=7)
                if hd == 0 and blk == 6:
                    c.wait(vm='vv'); a('s_barrier')
                if hd == 1 and blk != 4: pfi()
            if o.get('fine'): stamp(f'A{hd}_p1')
            def vread(blk, hf, r):
                a(f'ds_read_b128 {v(r,4)}, v{VA} offset:{blk*SLOT+hf*1056}'); c.lg.append(('v', blk))
            a(f'v_mov_b32 v{NEG}, v{MX}')
            vread(0, 0, VF); vread(0, 1, VF+4)
            a(f'v_permlane32_swap_b32 v{NEG}, v{MX}\nv_max_f32 v{MX}, v{NEG}, v{MX}')
            a(f'v_sub_f32 v{NEG}, 0, v{MX}\nv_sub_f32 v{NEG+1}, 0, v{MX}')
            for r in range(2, 16, 2): a(f'v_pk_mov_b32 v[{NEG+r}:{NEG+r+1}], v[{NEG}:{NEG+1}], v[{NEG}:{NEG+1}]')
            for r in range(0, 16, 2): a(pk('add', SM+r, SM+r, NEG))
            vread(8, 0, VF+8); vread(8, 1, VF+12)
            qk(1, SBUF[1], v(NEG,16))
            for r in range(16):
                a(f'v_exp_f32 v{SM+r}, v{SM+r}')
                if r % 2 == 0 and r >= 2: a(f'v_cvt_pk_bf16_f32 v{SM+(r-2)//2}, v{SM+r-2}, v{SM+r-1}')
                if r in (2, 8, 14): pfi()
            a(f'v_and_b32 v{SM+8}, v{V_AM}, v{SM}')
            a(f'v_cvt_pk_bf16_f32 v{SM+7}, v{SM+14}, v{SM+15}')
            for i in range(8):
                if i: a(f'v_and_b32 v{SM+8+i}, v{V_AM+i}, v{SM+i}')
                a(f'v_xor_b32 v{SM+i}, v{SM+8+i}, v{SM+i}')
            pend = [(v(VF,4), v(SM,4), ('v',8)), (v(VF+4,4), v(SM+4,4), None), (v(VF+8,4), v(SM+8,4), None), (v(VF+12,4), v(SM+12,4), None)]
            first = [True]
            if o.get('fine'): stamp(f'A{hd}_mg')
            def pv():
                A, B, tg = pend.pop(0)
                if tg: c.wait(lg=tg)
                a(f'{MF} {v(OA,16)}, {A}, {B}, {"0" if first[0] else v(OA,16)}'); first[0] = False
            q1 = v(QP+4, 4)
            for blk in range(1, 8):
                b = SBUF[blk % 2]; p = PB + 8*(blk % 2); vf = VF + 8*((blk+1) % 2)
                npv = len(pend)
                if blk + 1 < 8: qk(blk+1, SBUF[(blk+1) % 2], v(NEG,16))
                slots = (2, 5, 8, 11) if npv == 4 else (4, 10)
                for r in range(16):
                    a(f'v_exp_f32 v{b+r}, v{b+r}')
                    if r % 2 == 0 and r >= 2: a(f'v_cvt_pk_bf16_f32 v{p+(r-2)//2}, v{b+r-2}, v{b+r-1}')
                    if r in slots: pv()
                    if r == 6:
                        vread(blk, 0, vf)
                        if blk == 7: vread(blk, 1, vf+4)
                    if r == 15 and blk < 7: vread(blk, 1, vf+4)
                    if hd == 0 or blk < 5:
                        if r in (1, 13) or (r == 8 and (hd == 0 or True)): pfi()
                    else:
                        lim = {5: 8, 6: 10, 7: 16}[blk]
                        if r in (1, 3, 7, 9, 12, 14) and 16 - len(woo) < lim: take(woo, 1)
                    if hd == 1 and blk in (3, 4) and r in (3, 11) and 16 - len(woo) < 4: take(woo, 1)
                    if hd == 0 and r == 12:
                        for bb in {2: (0,), 3: (8, 1), 4: (2, 3), 5: (4, 5), 6: (6, 7)}.get(blk, ()): kread(1, bb)
                    if hd == 0 and blk == 7 and r == 0: c.wait(lg=('k', 1, 8)); a(f'{MF} {v(SBUF[0],16)}, {KR[1][0]}, {q1}, 0')
                    if hd == 0 and blk == 7 and r == 7: a(f'{MF} {v(SM,16)}, {KR[1][8]}, {q1}, 0')
                    if blk == 7 and r == 13:
                        pend.append((v(vf,4), v(p,4), ('v', blk))); pv()
                a(f'v_cvt_pk_bf16_f32 v{p+7}, v{b+14}, v{b+15}')
                if blk < 7: pend += [(v(vf,4), v(p,4), ('v', blk)), (v(vf+4,4), v(p+4,4), None)]
                else: pend += [(v(vf+4,4), v(p+4,4), None)]
                if hd == 1 and blk == 1:
                    c.wait(vm='st'); self.wsignal(SJ, 512, FF)
            if o.get('fine'): stamp(f'A{hd}_p2')
            pv()
            tail = [f'v_rcp_f32 v{OA+8}, v{OA+8}']
            tail += [f'v_mul_f32 v{OA+r}, v{OA+r}, v{OA+8}' for r in range(8)]
            tail += [f'v_cvt_pk_bf16_f32 v{OA+12+i}, v{OA+2*i}, v{OA+2*i+1}' for i in range(4)]
            tail += [('vm', f'buffer_store_dwordx4 {v(OA+12,4)}, v{V_L16}, s[4:7], s96 offen offset:{hd*1024} {DF}', 'st')]
        AC = 112; AC3 = 160
        oregs = [96, 100, 104, 108, 136, 140, 144, 148, 152, 156, 48, 52]
        def oreg(k):
            n = (k % 2)*8 + k//2
            return v(oregs[n], 4) if n < 12 else a_(A_X+4*(n-12), 4)
        a(f's_lshr_b32 s30, s20, 1\ns_add_u32 s30, s30, s29\ns_lshl_b32 s30, s30, 15\ns_and_b32 s31, s20, 1\ns_lshl_b32 s31, s31, 14\ns_add_u32 s30, s30, s31\ns_add_u32 s30, s30, {OF}\nv_add_u32 v{VX}, s30, v{V_L16}')
        a('s_mov_b32 s31, 4096\ns_mov_b32 s32, 8192\ns_mov_b32 s33, 12288')
        a(f'buffer_load_dword v{V_T1}, v{V_L4}, s[4:7], s27 offen offset:512 sc1'); c.vm.append('pl')
        take(tail, 99)
        assert not pf and not woo, (len(pf), len(woo))
        stamp('P2_done')
        lok = a.label('S')
        c.wait(vm='pl')
        a(f'v_cmp_ne_u32 vcc, v{V_E}, v{V_T1}\ns_and_b64 vcc, vcc, s[60:61]\ns_cbranch_scc0 {lok}')
        q0 = list(c.vm)
        self.poll('s27', 512, 's[60:61]', hook=lambda: self.wsignal(SJ, 512+256, FF))
        a(f'{lok}:')
        c.vm = q0
        def oload(k):
            so = ('0', 's31', 's32', 's33')[k//4]
            a(f'buffer_load_dwordx4 {oreg(k)}, v{VX}, s[4:7], {so} offen offset:{(k%4)*1024} sc1'); c.vm.append(('o', k))
        for k in range(0, 16, 2): oload(k)
        c.wait(vm='st'); self.wsignal(SJ, 512+256, FF)
        def omf(k, fill=None):
            c.wait(vm=('o', k))
            for ft in range(2):
                acc = v(AC3+ft*16, 16)
                a(f'{MF} {acc}, {v(wo_reg(k,ft),4)}, {oreg(k)}, {"0" if k == 0 else acc}')
                if fill: take(fill, 1)
        self.poll('s27', 512+256, 's[60:61]')
        stamp('sync_o')
        for k in range(1, 16, 2): oload(k)
        a('s_barrier')
        w1t = self.img_items(W1C, 112*KB, 96, 112)
        for k in range(0, 16, 2): omf(k)
        def red_write_items(accb):
            return [('ds', f'ds_write_b128 v{V_RW}, {v(accb+ft*16+4*q,4)} offset:{ft*128+q*32}', 'rw') for ft in range(2) for q in range(4)]
        def red_read(D):
            Ls = []
            for src in range(4):
                Ls.append(('ds', f'ds_read_b128 {v(D+src*8,4)}, v{V_RR} offset:{src*RW}', ('rr', D, src)))
                Ls.append(('ds', f'ds_read_b128 {v(D+src*8+4,4)}, v{V_RR} offset:{src*RW+16}', ('rr', D, src)))
            return Ls
        def red_add(t, D, srcs, usepk=True):
            Ls = []
            for src in srcs:
                if src % 2 == 0: Ls.append(('lw', ('rr', D, src+1)))
                if usepk:
                    for i in range(0, 8, 2): Ls.append(pk('add', V_RES+8*t+i, V_RES+8*t+i, D+src*8+i))
                else:
                    for i in range(8): Ls.append(f'v_add_f32 v{V_RES+8*t+i}, v{V_RES+8*t+i}, v{D+src*8+i}')
            return Ls
        take(w1t, 99)
        for k in range(1, 16, 2): omf(k)
        a(f's_lshl_b32 s31, s28, 15\ns_add_u32 s30, s31, {XF}\nv_add_u32 v{VX}, s30, v{V_L16}')
        take(red_write_items(AC3), 99)
        c.lg0(); a('s_barrier')
        stamp('P3_mfma')
        take(red_read(48), 99)
        pa = self.publish(0, V_RES, 112, DX); pb = self.publish(1, V_RES+8, 120, DX)
        take(red_add(0, 48, (0, 1)), 99); take(pa, 5)
        take(red_add(1, 48, (2, 3)), 99); take(pb, 5)
        while pa or pb: take(pa, 1); take(pb, 1)
        c.vm0()
        a(f's_mov_b32 exec_lo, 1\ns_mov_b32 exec_hi, 1\nbuffer_store_dword v{V_E}, v{V_L4}, s[4:7], {SX} offen offset:1024 {FF}\ns_mov_b64 exec, -1')
        a('s_barrier')
        stamp('P3_pub')
        self.poll('s34', 1024, '0xffffffff')
        stamp('sync_x2')
        AC4 = 192
        self.x_first()
        wn[0] = 0
        def w1adr(i): a(f'v_mad_u32_u24 v{TADR[(i//4)%2]}, s{S_R11+i//4}, 7, v{V_W1A}')
        def w1read(i, tl, ring=8):
            r = WB + 4*(wn[0] % ring); wn[0] += 1
            a(f'ds_read_b128 {v(r,4)}, v{TADR[(i//4)%2]} offset:{(i%4)*3584+tl*1024}'); c.lg.append(('w', i, tl))
            return v(r, 4)
        seq = [(i, tl) for i in range(32) for tl in range(3)]
        W = {}; AH = 6
        w1adr(0)
        for n in range(AH): W[seq[n]] = w1read(*seq[n])
        sc = stats_code(-LOG2E)
        for n, (i, tl) in enumerate(seq):
            if tl == 0: c.wait(vm=('x', i), lg=('w', i, 2))
            acc = v(AC4+16*tl, 16)
            a(f'{MF} {acc}, {W[i,tl]}, {xreg(i)}, {"0" if i == 0 else acc}')
            if n + AH < len(seq):
                ii, tt = seq[n+AH]
                if tt == 0 and ii % 4 == 0: w1adr(ii)
                W[ii, tt] = w1read(ii, tt)
            if tl == 1 and i + NPRE < 32: xload(i + NPRE)
            if i >= o.get('htpos', 22) and tl == 2 and i != 24: take(ht, 1)
            if i + NPRE >= 32 and tl < o.get('w2a', 2): take(w2, 1)
            if i >= 4: take(sc, 1)
            if (i, tl) == (24, 2):
                a(f's_mul_i32 s30, s28, {112*1024}\ns_mul_i32 s31, s22, 7168\ns_add_u32 s30, s30, s31\ns_add_u32 s96, s30, {HF}\ns_add_u32 s97, s96, 4096')
            if (i, tl) == (26, 2) and L == 0 and o.get('cpf2', 1):
                lpc = a.label('PC')
                a(f's_getpc_b64 s[30:31]\n{lpc}:\ns_add_u32 s30, s30, M_l1-{lpc}\ns_addc_u32 s31, s31, 0')
                a(f's_lshr_b32 s32, s2, 3\ns_lshl_b32 s32, s32, 2\ns_add_u32 s32, s32, s20\ns_lshl_b32 s32, s32, 8\nv_add_u32 v{V_T4}, s32, v{V_L4}')
                a(f'global_load_dword v{V_T4}, v{V_T4}, s[30:31]'); c.vm.append('pf')
            if (i, tl) == (16, 2):
                for t2 in range(3): a(f'{MF} {v(AC4+16*t2,16)}, {a_(A_C1+2*t2,4)}, {v(MB_,4)}, {v(AC4+16*t2,16)}')
            if (i, tl) == (30, 2): w1adr(0)
        assert not sc
        wn[0] = 0
        for tl in range(3): W[tl, 3] = w1read(tl, 3, 4)
        stamp('P4_A')
        A3 = 176; E = ST
        def silu_items(accb, kb, usepk):
            Ls = []
            if usepk:
                for r in range(0, 8, 2): Ls.append(pk('mul', E+r, RA2, accb+r))
                for r in range(8):
                    Ls.append(f'v_exp_f32 v{E+r}, v{E+r}')
                    if r % 2: Ls.append(pk('mul', accb+r-1, RA, accb+r-1))
                for r in range(0, 8, 2): Ls.append(f'v_pk_add_f32 v[{E+r}:{E+r+1}], v[{E+r}:{E+r+1}], 1.0 op_sel_hi:[1,0]')
                for r in range(8): Ls.append(f'v_rcp_f32 v{E+r}, v{E+r}')
                for r in range(0, 8, 2): Ls.append(pk('mul', accb+r, accb+r, E+r))
            else:
                for r in range(8): Ls.append(f'v_mul_f32 v{E+r}, v{RA2}, v{accb+r}')
                for r in range(8): Ls += [f'v_exp_f32 v{E+r}, v{E+r}', f'v_mul_f32 v{accb+r}, v{RA}, v{accb+r}']
                for r in range(8): Ls.append(f'v_add_f32 v{E+r}, 1.0, v{E+r}')
                for r in range(8): Ls.append(f'v_rcp_f32 v{E+r}, v{E+r}')
                for r in range(8): Ls.append(f'v_mul_f32 v{accb+r}, v{accb+r}, v{E+r}')
            for i in range(4): Ls.append(f'v_cvt_pk_bf16_f32 v{accb+i}, v{accb+2*i}, v{accb+2*i+1}')
            Ls.append(('vm', f'buffer_store_dwordx4 {v(accb,4)}, v{V_L16}, s[4:7], {"s96" if kb < 4 else "s97"} offen offset:{(kb%4)*1024} {DF}', ('hs', kb)))
            return Ls
        NB = o.get('p4nb', 3); NS0 = o.get('ns0', 3)
        epi = []
        for kb in range(NB): epi += silu_items(AC4+8*kb, kb, False)
        per = -(-len(epi) // 31)
        a(f'{MF} {v(A3,16)}, {a_(A_C1+6,4)}, {v(MB_,4)}, 0')
        for i in range(32):
            if i % 2 == 0: c.wait(lg=('w', i+1, 3))
            a(f'{MF} {v(A3,16)}, {W[i,3]}, {xreg(i)}, {v(A3,16)}')
            if i + 3 < 32:
                if (i+3) % 4 == 0: w1adr(i+3)
                W[i+3, 3] = w1read(i+3, 3, 4)
            if i >= 1: take(epi, per)
            if i % 2 == 0: take(w2, 1)
        take(epi, 99)
        H0, H1, H2, H3 = VX, V_T2, V_T4, V_T5
        a(f's_mul_i32 s30, s29, {112*1024}\ns_mul_i32 s31, s20, {28*1024}\ns_add_u32 s30, s30, s31\ns_add_u32 s30, s30, {HF}')
        a(f'v_add_u32 v{H0}, s30, v{V_L16}\nv_add_u32 v{H1}, 4096, v{H0}\nv_add_u32 v{H2}, {112*1024}, v{H0}\nv_add_u32 v{H3}, {116*1024}, v{H0}')
        for kb in range(NB, 7):
            its = silu_items(AC4+8*kb if kb < 6 else A3, kb, True)
            take(its, 12); take(w2, 1); take(its, 12); take(w2, 1); take(its, 99)
            if kb == max(NS0, NB):
                c.wait(vm=('hs', NS0-1)); self.wsignal(SJ, 1536, FF)
            if kb == 5:
                a(f'buffer_load_dword v{V_T0}, v{V_L4}, s[4:7], s27 offen offset:1536 sc1'); c.vm.append('pl')
        stamp('P4_epi')
        HB = 48; NH = o.get('nh', 16)
        lok = a.label('S')
        c.wait(vm='pl')
        a(f'v_cmp_ne_u32 vcc, v{V_E}, v{V_T0}\ns_and_b64 vcc, vcc, s[36:37]\ns_cbranch_scc0 {lok}')
        q0 = list(c.vm)
        self.poll('s27', 1536, 's[36:37]', hook=lambda: self.wsignal(SJ, 1536+256, FF))
        a(f'{lok}:')
        c.vm = q0
        if L is None:
            def allw2():
                take(w2all, 99); a('s_waitcnt vmcnt(0)')
            self.layer0(allw2)
        stamp('sync_h')
        hseq = [(t, p, kb) for t in range(2) for p in range(4) for kb in range(NS0)] + [(t, p, kb) for t in range(2) for p in range(4) for kb in range(NS0, 7)]
        N0 = 8*NS0; NT0 = N0 + 4*(7-NS0)
        def hload(n):
            t, p, kb = hseq[n]
            a(f'buffer_load_dwordx4 {v(HB+4*(n%NH),4)}, v{(H0,H1,H2,H3)[t*2+kb//4]}, s[4:7], s{S_P+p} offen offset:{(kb%4)*1024} sc1'); c.vm.append(('h', n))
        take(w2, 99)
        for n in range(min(8,NH)): hload(n)
        c.wait(vm=('hs', 6)); self.wsignal(SJ, 1536+256, FF)
        for n in range(8, NH): hload(n)
        if L != 1: a('s_barrier')
        RD = 176; PT = 212
        a(f's_add_u32 {SX}, {SX}, 32768\ns_add_u32 s34, s34, 32768')
        fill = []
        wqre = self.img_items(WQC, 96*KB, 0, 96) if L != 1 else []
        def pub(t, usepk):
            if L == 1:
                return [f'v_cvt_pk_bf16_f32 v{PT+i}, v{V_RES+8*t+2*i}, v{V_RES+8*t+2*i+1}' for i in range(4)] + \
                       [('vm', f'buffer_store_dwordx4 v[{PT}:{PT+3}], v{V_XROW}, s[16:19], {"s63" if t else "0"} offen {OF_}', 'st')]
            Ls = self.publish(t, V_RES+8*t, PT, DX, usepk=usepk)
            if L is None:
                Ls.append(('vm', f'buffer_store_dwordx4 v[{PT}:{PT+3}], v{V_XROW}, s[16:19], {"s63" if t else "0"} offen', 'st'))
            return Ls
        seen = set()
        for n in range(56):
            t, p, kb = hseq[n]
            if n == o.get('plpos', 3):
                a(f'buffer_load_dword v{V_T0}, v{V_L4}, s[4:7], s27 offen offset:{1536+256} sc1'); c.vm.append('pl')
            if n + NH == N0:
                lok = a.label('S')
                c.wait(vm='pl')
                a(f'v_cmp_ne_u32 vcc, v{V_E}, v{V_T0}\ns_and_b64 vcc, vcc, s[36:37]\ns_cbranch_scc0 {lok}')
                q0 = list(c.vm)
                self.poll('s27', 1536+256, 's[36:37]')
                a(f'{lok}:')
                c.vm = q0
            if o.get('fine5') and n in (1, 8, 9, 24, 40, 46): stamp(f'P5_{n}')
            c.wait(vm=('h', n))
            for ft in range(2):
                acc = v(AC+(t*2+ft)*16, 16)
                a(f'{MF} {acc}, {a_(w2a(p,kb,ft),4)}, {v(HB+4*(n%NH),4)}, {acc if t in seen else "0"}')
                if n > NT0: take(fill, 1 if n <= NT0+4 else 5)
            seen.add(t)
            if n + NH < 56: hload(n + NH)
            if n + NH >= 56 or n % 5 == 4: take(wqre, 1)
            if n == NT0: fill = red_write_items(AC)
            if n == NT0 + 5:
                c.lg0(); a('s_barrier')
                fill = red_read(RD) + ['s_nop 0']*2 + red_add(0, RD, range(4), False) + pub(0, False)
        take(fill, 99)
        take(wqre, 99)
        stamp('P5_kloop')
        a('s_barrier')
        take(red_write_items(AC+32), 99)
        if L != 1:
            c.wait(vm='st'); self.wsignal(SX, 0, FF)
            c.wait(vm='pf')
        c.lg0(); a('s_barrier')
        take(red_read(RD), 99)
        take(red_add(1, RD, range(4)), 99)
        take(pub(1, True), 99)
        if L == 0: a('s_barrier')
        stamp('P5_pub')
        self.dump_stamps()
        if L == 1:
            a('s_branch M_done'); return
        if L is None: a('s_cmp_lg_u32 s25, 0\ns_cbranch_scc1 M_done')
        a(f's_lshl_b32 s31, s28, 15\ns_add_u32 s30, s31, {XF}\nv_add_u32 v{VX}, s30, v{V_L16}')
        a(f's_mov_b32 s25, 1\ns_add_u32 s26, s26, {LSTR}\ns_add_u32 s27, s27, 32768\ns_add_u32 {SJ}, {SJ}, 32768')
        c.wait(vm='st'); self.wsignal(SX, 128, FF)
        if L is None: a('s_branch M_layer_slow')

    def run(self):
        a, c = self.a, self.c
        self.prep()
        self.prologue()
        self.body('fast', 0)
        a('M_l1:')
        self.body('fast', 1)
        a('M_slow:')
        c.vm = []; c.lg = []
        self.body('slow', None)
        a('M_done:\ns_waitcnt vmcnt(0)')
        a('M_end:')

if __name__ == '__main__':
    a = Asm()
    a.launch('prep_kernel', 608, 256, lds=16384)
    a.launch('main_kernel', 256, 256, lds=163840)
    diag = len(sys.argv) > 2
    G(a, diag, eval(os.environ.get('OPTS', '{}'))).run()
    if diag: open(sys.argv[2], 'w').write(' '.join(STAMPS))
    out = sys.argv[1] if len(sys.argv) > 1 else 'interleave_layers__sliding_block__dense_activation_silu__prompt.s'
    a.write(out)
```
